```python
import torch

def _softmax(x, axis=-1):
    return torch.softmax(x, dim=axis)
def _gelu(x):
    return torch.nn.functional.gelu(x, approximate="tanh")
def _silu(x):
    return torch.nn.functional.silu(x)
def _sigmoid(x):
    return torch.sigmoid(x)
def _layernorm(x, axis=-1, eps=1e-5):
    m = x.mean(dim=axis, keepdim=True)
    v = x.var(dim=axis, keepdim=True, unbiased=False)
    return (x - m) / torch.sqrt(v + eps)
def _scatter_add(tgt, idx, src, axis=0):
    return tgt.clone().index_add_(axis, idx, src)
def _segment_sum(src, seg, n):
    out = torch.zeros((n,) + src.shape[1:], dtype=src.dtype)
    return out.index_add_(0, seg, src)
def _pad(x, pw):
    flat = tuple(v for pair in reversed(pw) for v in pair)
    return torch.nn.functional.pad(x, flat)

kernel_name = 'gated_mix__linear_attn_block__dense_activation_silu__prompt'

def setup_inputs():

    _w = (lambda a: (lambda t: t.to(torch.bfloat16) if t.is_floating_point() else t)(torch.as_tensor(a)))
    def _A_setup():
        B, S, D = 1, 2048, 512
        return {
            "x": _w((lambda *s: torch.randn(*s, dtype=torch.bfloat16) * 0.1)(B, S, D)),
            "wqkv": _w((lambda *s: torch.randn(*s, dtype=torch.bfloat16) * 0.8)(D, 3 * D)),
            "wo": _w((lambda *s: torch.randn(*s, dtype=torch.bfloat16) * 0.4)(D, D)),
        }
    _A_in = _A_setup()

    def _B_setup():
        B, S, D, F = 1, 2048, 512, 1792
        return {
            "x": _w((lambda *s: torch.randn(*s, dtype=torch.bfloat16) * 0.1)(B, S, D)),
            "w1": _w((lambda *s: torch.randn(*s, dtype=torch.bfloat16) * 3.2)(D, F) * (D ** -0.5)),
            "w2": _w((lambda *s: torch.randn(*s, dtype=torch.bfloat16) * 3.2)(F, D) * (F ** -0.5)),
        }
    _B_in = _B_setup()

    return {
        "A_x": _A_in["x"],
        "A_wqkv": _A_in["wqkv"],
        "A_wo": _A_in["wo"],
        "B_x": _B_in["x"],
        "B_w1": _B_in["w1"],
        "B_w2": _B_in["w2"],
        "gate_w": _w((lambda *s: torch.randn(*s, dtype=torch.bfloat16) * 0.1)(512) * 16.0),
    }

def reference(A_x, A_wqkv, A_wo, B_x, B_w1, B_w2, gate_w):
    def _A_ref(x, wqkv, wo):
        B, S, D = x.shape
        H = 32; Dh = D // H
        qkv = (lambda x, *d: x.permute(*d))((x @ wqkv).reshape(B, S, 3, H, Dh), 2, 0, 3, 1, 4)
        q, k, v = qkv[0], qkv[1], qkv[2]
        phi = lambda t: torch.where(t > 0, t + 1, torch.exp(t)) + 1e-6
        pq, pk = phi(q), phi(k)
        kv = torch.einsum("bhsd,bhse->bhde", pk, v)
        z = torch.einsum("bhsd->bhd", pk)
        num = torch.einsum("bhqd,bhde->bhqe", pq, kv)
        den = torch.einsum("bhqd,bhd->bhq", pq, z)[..., None] + 1e-6
        o = num / den
        return (lambda x, *d: x.permute(*d))(o, 0, 2, 1, 3).reshape(B, S, D) @ wo

    def _B_ref(x, w1, w2):
        h = torch.einsum("bsd,df->bsf", x, w1)
        h = _silu(h)
        out = torch.einsum("bsf,fd->bsd", h, w2)
        return out

    x = A_x
    g = _sigmoid((x * gate_w).sum(-1, keepdims=True))
    a = _A_ref(x, A_wqkv, A_wo)
    b = _B_ref(x, B_w1, B_w2)
    return g * a + (1 - g) * b
```

```python
import re

TRANS = ("v_exp_f32", "v_log_f32", "v_rcp_f32", "v_rsq_f32", "v_sqrt_f32", "v_sin_f32", "v_cos_f32")
_REG = re.compile(r"^(-|\|)?([vas])(\d+)\|?$")
_RNG = re.compile(r"^(-|\|)?([vas])\[(\d+):(\d+)\]\|?$")


def regs_of(op):
    op = op.strip()
    m = _REG.match(op)
    if m:
        return {(m.group(2), int(m.group(3)))}
    m = _RNG.match(op)
    if m:
        return {(m.group(2), i) for i in range(int(m.group(3)), int(m.group(4)) + 1)}
    if op == "vcc":
        return {("s", "vcc")}
    if op == "exec":
        return {("s", "exec")}
    if op == "m0":
        return {("s", "m0")}
    return set()


class Ins:
    def __init__(self, text, tag=None):
        self.text = text
        self.tag = tag
        body = text.split(";")[0].strip()
        self.label = body.endswith(":")
        parts = body.split(None, 1)
        self.op = parts[0] if parts else ""
        rest = parts[1] if len(parts) > 1 else ""
        ops = [o.strip() for o in rest.split(",")] if rest else []
        mods = ""
        if ops:
            last = ops[-1].split(None, 1)
            ops[-1] = last[0]
            mods = last[1] if len(last) > 1 else ""
        self.ops, self.mods = ops, mods
        op = self.op
        self.kind = "other"
        self.rd, self.wr = set(), set()
        self.srcc = set()
        self.srcab = set()
        self.passes = 0
        R = [regs_of(o) for o in ops]
        allr = set().union(*R) if R else set()
        if self.label or not op:
            self.kind = "label"
        elif op.startswith("v_mfma"):
            self.kind = "mfma"
            self.passes = 8 if "32x32" in op else 4
            self.wr = R[0]
            self.srcab = R[1] | R[2]
            self.srcc = R[3]
            self.rd = self.srcab | self.srcc
        elif op.startswith("v_"):
            self.kind = "valu"
            if "permlane" in op and "swap" in op:
                self.wr = R[0] | R[1]
                self.rd = R[0] | R[1]
            else:
                self.wr = R[0]
                self.rd = set().union(*R[1:]) if len(R) > 1 else set()
                if op.startswith(("v_fmac", "v_dot2c", "v_writelane", "v_pk_fmac")):
                    self.rd |= R[0]
                if op.startswith(("v_add_co", "v_sub_co", "v_addc_co")):
                    self.wr |= R[1]
        elif op.startswith("ds_"):
            self.kind = "ds"
            if op.startswith("ds_read"):
                self.wr = R[0]
                self.rd = set().union(*R[1:]) if len(R) > 1 else set()
            else:
                self.rd = allr
            if "addtid" in op:
                self.rd |= {("s", "m0")}
        elif op.startswith(("buffer_", "global_")):
            self.kind = "vmem"
            is_lds = re.search(r"\blds\b", mods) is not None
            if "load" in op and not is_lds:
                self.wr = R[0]
                self.rd = set().union(*R[1:])
            else:
                self.rd = allr
            self.store = "store" in op
            self.wide_store = self.store and op.endswith(("x3", "x4"))
            self.data = R[0] if self.store and op.startswith("buffer_") else set()
            if is_lds:
                self.rd |= {("s", "m0")}
        elif op.startswith(("s_load", "s_buffer_load", "s_memtime", "s_memrealtime")):
            self.kind = "smem"
            self.wr = R[0]
            self.rd = set().union(*R[1:]) if len(R) > 1 else set()
        elif op in ("s_waitcnt", "s_barrier", "s_nop", "s_endpgm", "s_setprio", "s_sleep") or op.startswith(
            ("s_cbranch", "s_branch")
        ):
            self.kind = "ctl"
        elif op.startswith("s_"):
            self.kind = "salu"
            if op.startswith(("s_cmp", "s_bitcmp")):
                self.rd = allr
            else:
                self.wr = R[0]
                self.rd = set().union(*R[1:]) if len(R) > 1 else set()
                if "saveexec" in op:
                    self.wr |= {("s", "exec")}
        self.trans = op.startswith(TRANS)
        self.dpp = "quad_perm" in mods or "row_" in mods
        self.states = 1
        if op == "s_nop":
            self.states = int(ops[0], 0) + 1


def need_states(p, c):
    n = 0
    if p.kind == "valu":
        vw = {r for r in p.wr if r[0] in "va"}
        sw = {r for r in p.wr if r[0] == "s"}
        if c.kind == "mfma" and vw & c.rd:
            n = max(n, 2)
        if c.kind == "valu":
            if p.trans and not c.trans and vw & c.rd:
                n = max(n, 1)
            if c.dpp and vw & c.rd:
                n = max(n, 2)
            if "permlane" in c.op and vw & c.rd:
                n = max(n, 2)
            if c.op.startswith(("v_readfirstlane", "v_readlane")) and vw & c.rd:
                n = max(n, 1)
            if sw & c.rd:
                n = max(n, 2)
        if c.kind == "vmem" and sw & c.rd:
            n = max(n, 5)
        if c.kind == "ctl" and c.op.startswith("s_cbranch_vcc") and ("s", "vcc") in sw:
            n = max(n, 5)
    elif p.kind == "mfma":
        big = 12 if p.passes == 8 else 8
        if c.kind == "mfma":
            if p.wr & c.srcab:
                n = max(n, big)
            if p.wr & c.srcc and not (p.wr == c.srcc and p.passes == c.passes):
                n = max(n, big - 2)
            if p.wr & c.wr and not (p.wr == c.srcc and p.passes == c.passes):
                n = max(n, big - 2)
        elif c.kind in ("valu", "ds", "vmem"):
            if p.wr & (c.rd | c.wr):
                n = max(n, big)
            if c.kind == "valu" and p.srcc & c.wr:
                n = max(n, 7 if p.passes == 8 else 3)
    elif p.kind == "salu":
        if ("s", "m0") in p.wr and c.kind in ("vmem", "ds") and ("s", "m0") in c.rd:
            n = max(n, 1)
    elif p.kind == "vmem" and getattr(p, "wide_store", False):
        if p.data & c.wr:
            n = max(n, 2 if c.kind == "valu" else 1)
    return n


class Asm:
    def __init__(self):
        self.out = []
        self.vm = []
        self.lg = []
        self.nops = 0

    def state(self):
        return (list(self.vm), list(self.lg))

    def set_state(self, st):
        self.vm, self.lg = list(st[0]), list(st[1])

    def sig(self):
        return ([(t, tuple(sorted(d, key=str))) for t, d, _ in self.vm],
                [(t, tuple(sorted(d, key=str))) for t, d, _ in self.lg])

    def _emit(self, ins):
        if ins.kind not in ("label",):
            dist = 0
            need = 0
            for p in reversed(self.out):
                if p.kind == "label":
                    continue
                k = need_states(p, ins) - dist
                need = max(need, k)
                dist += p.states
                if dist >= 20:
                    break
            while need > 0:
                k = min(need, 16)
                self.out.append(Ins(f"s_nop {k - 1}"))
                self.nops += k
                need -= k
        self.out.append(ins)

    def _wait(self, vm=None, lg=None):
        parts = []
        if vm is not None and vm < len(self.vm):
            assert vm <= 63, vm
            self.vm = self.vm[len(self.vm) - vm:] if vm else []
            parts.append(f"vmcnt({vm})")
        if lg is not None and lg < len(self.lg):
            if any(s for _, _, s in self.lg):
                lg = 0
            lg = min(lg, 15)
            self.lg = self.lg[len(self.lg) - lg:] if lg else []
            parts.append(f"lgkmcnt({lg})")
        if parts:
            self._emit(Ins("s_waitcnt " + " ".join(parts)))

    @staticmethod
    def _younger(q, pred):
        idx = [i for i, e in enumerate(q) if pred(e)]
        return None if not idx else len(q) - 1 - idx[-1]

    def wait_vm(self, *tags):
        n = self._younger(self.vm, lambda e: e[0] in tags)
        if n is not None:
            self._wait(vm=min(n, 63))

    def wait_lg(self, *tags):
        n = self._younger(self.lg, lambda e: e[0] in tags)
        if n is not None:
            self._wait(lg=n)

    def wait_all(self, vm=True, lg=True):
        self._wait(vm=0 if vm else None, lg=0 if lg else None)

    def __call__(self, text, tag=None):
        ins = Ins(text, tag)
        touched = ins.rd | ins.wr
        nv = self._younger(self.vm, lambda e: e[1] & touched)
        nl = self._younger(self.lg, lambda e: e[1] & touched)
        if nv is not None:
            nv = min(nv, 63)
        if nv is not None or nl is not None:
            self._wait(vm=nv, lg=nl)
        if ins.kind == "vmem" and len(self.vm) >= 63:
            self._wait(vm=62)
        self._emit(ins)
        if ins.kind == "vmem":
            self.vm.append((tag, frozenset(ins.wr), False))
        elif ins.kind == "ds":
            self.lg.append((tag, frozenset(ins.wr), False))
        elif ins.kind == "smem":
            self.lg.append((tag, frozenset(ins.wr), True))
        return ins

    def raw(self, text):
        self._emit(Ins(text))

    def label(self, name):
        self.out.append(Ins(name + ":"))

    def check_backedge(self, start_idx):
        body = [i for i in self.out[start_idx:] if i.kind != "label"]
        tail, head = body[-24:], body[:24]
        for hi, c in enumerate(head):
            dist = sum(x.states for x in head[:hi])
            for p in reversed(tail):
                if need_states(p, c) > dist:
                    raise RuntimeError(f"back-edge hazard: {p.text} -> {c.text}")
                dist += p.states

    def text(self):
        lines = []
        for i in self.out:
            lines.append(i.text if i.kind == "label" else "  " + i.text)
        return "\n".join(lines) + "\n"
```

```python
import sys
from asmlib import Asm

KNAME = "gated_mix__linear_attn_block__dense_activation_silu__prompt_kernel"
K = 1024

WS_EPOCH, WS_HF, WS_OF, WS_KVF = 0, 0x10000, 0x20000, 0x30000
WS_OMG, WS_KV, WS_A, WS_TS = 0x40000, 0x80000, 0x200000, 0x1000000
WS_BYTES = 0x1100000

STAGE = [72 * K, 116 * K, 0]
DELTA = [44 * K, -116 * K, 72 * K]
L_SCR, L_T0, L_T1 = 64 * K, 112 * K, 156 * K
REGB, REGC = 72 * K, 116 * K

SX, SW, SW2, SWO, SWS, SOUT, SDBG, SG = 4, 8, 12, 16, 20, 24, 28, 32
sW, sRH, sCH, sRB, sCOL, sRT, sCC = 36, 37, 38, 39, 40, 41, 42
sOX, sOW, sMX, sMW, sCNT = 43, 44, 45, 46, 47
sDA, sDB, sDC = 48, 49, 54
sNON, sOB, sBA, sBB = 50, 51, 52, 53
sT0, sT1, sT2, sT3 = 66, 67, 68, 69
sHA, sHB, sH3, sA0, sA1, sSPIN = 70, 71, 72, 73, 74, 75
cNL2E, cONE, cEPS, cM16, cL2E = 56, 58, 60, 62, 64
sTS = 76

vL, vL16, vZ = 1, 2, 3
ACC = 16
XA, XB, WF = 128, 136, 144
vXA, vXB, vW, vW3 = 176, 180, 184, 185
vDX, vDW, vDB = 186, 190, 197
vTA, vTB = 199, 201
vPA, vFL, vNO = 203, 204, 205
vM = 206
TMP = 216
NB_REG, A_RING, A_DEPTH = 18, 144, 14


def srd(n):
    return f"s[{n}:{n + 3}]"


def vr(b, n=4):
    return f"v[{b}:{b + n - 1}]"


def ar(b, n=4):
    return f"a[{b}:{b + n - 1}]"


def sp(n):
    return f"s[{n}:{n + 1}]"


class Gen:
    def __init__(self, diag=False, cfg=None):
        self.a = Asm()
        self.diag = diag
        self.cfg = dict(pre_flag=4, spin=1 << 16)
        self.cfg.update(cfg or {})
        self.nlab = 0
        self.nts = 0

    def lab(self, p):
        self.nlab += 1
        return f"L_{p}_{self.nlab}"

    def ts(self, k):
        if self.diag:
            self.a(f"s_memtime {sp(sTS + 2 * k)}")

    def prologue(self):
        a = self.a
        a("s_cmp_ge_u32 s2, 256")
        a("s_cbranch_scc1 L_exit")
        if self.diag:
            a(f"s_memrealtime {sp(sTS + 24)}")
            self.ts(0)
        a(f"s_load_dwordx2 {sp(SX)}, s[0:1], 0")
        a(f"s_bitcmp1_b32 s2, 3")
        a(f"s_cbranch_scc1 L_att")

    def ids(self, role):
        a = self.a
        a(f"s_load_dwordx2 {sp(SW)}, s[0:1], {32 if role == 'ffn' else 8}")
        a(f"s_load_dwordx2 {sp(SWS)}, s[0:1], 72")
        a(f"s_load_dwordx2 {sp(SW2)}, s[0:1], 40")
        a(f"s_load_dwordx2 {sp(SWO)}, s[0:1], 16")
        a(f"s_load_dwordx2 {sp(SOUT)}, s[0:1], 56")
        a(f"s_load_dwordx2 {sp(SDBG)}, s[0:1], 64")
        if role == "att":
            a(f"s_load_dwordx2 {sp(SG)}, s[0:1], 48")
        a(f"v_lshrrev_b32 v4, 6, v0")
        a(f"v_and_b32 v{vL}, 63, v0")
        a(f"v_readfirstlane_b32 s{sW}, v4")
        a(f"s_and_b32 s{sT0}, s2, 1")
        a(f"s_lshl_b32 s{sT0}, s{sT0}, 3")
        a(f"s_lshr_b32 s{sRB}, s2, 5")
        a(f"s_add_u32 s{sRB}, s{sRB}, s{sT0}")
        a(f"s_and_b32 s{sT0}, s2, 6")
        a(f"s_bfe_u32 s{sCOL}, s2, 0x10004")
        a(f"s_add_u32 s{sCOL}, s{sCOL}, s{sT0}")
        a(f"s_lshr_b32 s{sRH}, s{sW}, 1")
        a(f"s_and_b32 s{sCH}, s{sW}, 1")
        a(f"v_lshrrev_b32 v4, 3, v{vL}")
        a(f"v_lshrrev_b32 v5, 4, v{vL}")
        a(f"v_and_b32 v6, 7, v{vL}")
        a(f"v_xor_b32 v7, v5, v6")
        a(f"v_lshlrev_b32 v7, 4, v7")
        a(f"v_lshl_add_u32 v{vDX}, v4, 10, v7")
        a(f"v_xor_b32 v{vDX + 1}, 64, v{vDX}")
        a(f"v_add_u32 v{vDX + 1}, 7168, v{vDX + 1}")
        a(f"v_add_u32 v{vDX + 2}, 14336, v{vDX}")
        a(f"v_add_u32 v{vDX + 3}, 14336, v{vDX + 1}")
        a(f"s_lshl_b32 s{sOX}, s{sRB}, 17")
        a(f"s_lshl_b32 s{sT0}, s{sW}, 15")
        a(f"s_add_u32 s{sOX}, s{sOX}, s{sT0}")
        a(f"s_lshl_b32 s{sMX}, s{sW}, 12")
        a(f"s_add_u32 s{sMX}, s{sMX}, {STAGE[0]}")
        for s, n in ((SX, 2048 * 1024), (SW, 512 * 3584 if role == "ffn" else 512 * 3072)):
            a(f"s_mov_b32 s{s + 2}, {n}")
            a(f"s_mov_b32 s{s + 3}, 0x20000")
        a(f"v_lshlrev_b32 v{vL16}, 4, v{vL}")
        a(f"v_lshlrev_b32 v8, 2, v5")
        a(f"v_and_b32 v8, 4, v8")
        a(f"v_xor_b32 v8, v8, v6")
        a(f"v_lshlrev_b32 v8, 4, v8")

    def x_dma(self, tag):
        return [f"buffer_load_dwordx4 v{vDX + i}, {srd(SX)}, s{sOX} offen offset:{1024 * i} lds" for i in range(4)]

    def w_dma(self, role):
        n = 7 if role == "ffn" else 6
        return [f"buffer_load_dwordx4 v{vDW + m}, {srd(SW)}, s{sOW} offen offset:{1024 * (m % 4)} lds" for m in range(n)]

    def stage_items(self, role):
        xs, ws = self.x_dma(None), self.w_dma(role)
        slots = [[f"s_mov_b32 m0, s{sMX}", xs[0]], [xs[1]], [xs[2]], [xs[3], f"s_add_u32 s{sOX}, s{sOX}, 128"]]
        for m, t in enumerate(ws):
            pre = []
            if m == 0:
                pre = [f"s_mov_b32 m0, s{sMW}"]
            elif m == 4:
                pre = [f"s_add_u32 m0, s{sMW}, 4096"]
            post = []
            if m == len(ws) - 1:
                post = [f"s_add_u32 s{sOW}, s{sOW}, {64 * (3584 if role == 'ffn' else 3072)}"]
            slots.append(pre + [t] + post)
        return slots

    def setup(self, role):
        a = self.a
        pitch = 3584 if role == "ffn" else 3072
        a(f"s_mul_i32 s{sOW}, s{sW}, {16 * pitch}")
        a(f"s_mul_i32 s{sT0}, s{sCOL}, {448 if role == 'ffn' else 128}")
        a(f"s_add_u32 s{sOW}, s{sOW}, s{sT0}")
        a(f"s_mul_i32 s{sMW}, s{sW}, {7168 if role == 'ffn' else 6144}")
        a(f"s_add_u32 s{sMW}, s{sMW}, {STAGE[0] + 16384}")
        a.wait_all()
        slots = self.stage_items(role)
        for sl in slots[:4]:
            for t in sl:
                a(t, "S0")
        if role == "ffn":
            a(f"s_movk_i32 s{sT0}, 3136")
            for m in range(7):
                a(f"v_add_u32 v9, {64 * m}, v{vL}")
                a(f"v_mul_u32_u24 v9, 9363, v9")
                a(f"v_lshrrev_b32 v9, 18, v9")
                a(f"v_mad_u32_u24 v{vDW + m}, v9, s{sT0}, v{vL16}")
                if m >= 4:
                    a(f"v_add_u32 v{vDW + m}, 4096, v{vDW + m}")
                for t in slots[4 + m]:
                    a(t, "S0")
        else:
            a(f"v_mul_u32_u24 v9, 3072, v4")
            a(f"v_add_u32 v9, v9, v8")
            for m in range(6):
                off = (m & 1) * 8 * 3072 + (1024, 2048, 0)[m >> 1] - 1024 * (m % 4)
                a(f"v_add_u32 v{vDW + m}, {off}, v9")
                for t in slots[4 + m]:
                    a(t, "S0")
            a(f"s_mov_b32 s{SG + 2}, 1024")
            a(f"s_mov_b32 s{SG + 3}, 0x20000")
            a(f"s_mov_b32 m0, {L_T0}")
            a(f"buffer_load_dwordx4 v{vL16}, {srd(SG)}, 0 offen lds", "S0")
        a(f"s_add_u32 s{sMX}, s{sMX}, {DELTA[0]}")
        a(f"s_add_u32 s{sMW}, s{sMW}, {DELTA[0]}")
        for sl in slots:
            for t in sl:
                a(t, "S")
        a(f"s_sub_u32 s{sMX}, s{sMX}, {-DELTA[1]}")
        a(f"s_sub_u32 s{sMW}, s{sMW}, {-DELTA[1]}")
        for s, n in ((SWS, WS_BYTES), (SW2, 1792 * 1024), (SWO, 512 * 1024), (SOUT, 2048 * 1024), (SDBG, 256)):
            a(f"s_mov_b32 s{s + 2}, {n}")
            a(f"s_mov_b32 s{s + 3}, 0x20000")
        a(f"v_mov_b32 v{vZ}, 0")
        if role == "ffn":
            skip = self.lab("noepoch")
            a(f"s_or_b32 s{sT0}, s2, s{sW}")
            a(f"s_cmp_lg_u32 s{sT0}, 0")
            a.raw(f"s_cbranch_scc1 {skip}")
            a.raw(f"s_load_dword s{sT0}, {sp(SWS)}, {WS_EPOCH}")
            a.raw("s_waitcnt lgkmcnt(0)")
            a.raw(f"s_add_u32 s{sT0}, s{sT0}, 1")
            a.raw(f"s_max_u32 s{sT0}, s{sT0}, 1")
            a.raw(f"v_mov_b32 v9, s{sT0}")
            a.raw("s_mov_b64 exec, 1")
            a.raw(f"buffer_store_dword v9, v{vZ}, {srd(SDBG)}, 0 offen sc1")
            a.raw(f"buffer_store_dword v9, v{vZ}, {srd(SWS)}, 0 offen sc1")
            a.raw("s_mov_b64 exec, -1")
            a.label(skip)
        a(f"s_and_b32 s{sRT}, s2, 7")
        a(f"s_lshl_b32 s{sRT}, s{sRT}, 2")
        a(f"s_lshr_b32 s{sT0}, s2, 6")
        a(f"s_add_u32 s{sRT}, s{sRT}, s{sT0}")
        a(f"s_bfe_u32 s{sCC}, s2, 0x30003")
        a(f"s_mov_b32 s{sDA}, {DELTA[0]}")
        a(f"s_mov_b32 s{sDB}, {DELTA[1]}")
        a(f"s_mov_b32 s{sDC}, {DELTA[2]}")
        for c, val in ((cNL2E, 0xBFB8AA3B), (cONE, 0x3F800000), (cEPS, 0x358637BD), (cL2E, 0x3FB8AA3B),
                       (cM16, 0xFFFF0000)):
            a(f"s_mov_b32 s{c}, {val:#x}")
            a(f"s_mov_b32 s{c + 1}, {val:#x}")
        a(f"s_mov_b32 s{sSPIN}, {self.cfg['spin']}")
        a(f"v_lshl_add_u32 v{vDB}, v4, 10, v8")
        a(f"v_add_u32 v{vDB + 1}, 7168, v{vDB}")
        a(f"s_mul_i32 s{sOB}, s{sW}, {448 * 1024}")
        a(f"s_lshl_b32 s{sT0}, s{sCC}, 7")
        a(f"s_add_u32 s{sOB}, s{sOB}, s{sT0}")
        a(f"s_lshl_b32 s{sBA}, s{sW}, 14")
        a(f"s_mul_i32 s{sBB}, s{sW}, {10 * K}")
        a(f"s_add_u32 s{sBB}, s{sBB}, {REGB}")
        a(f"v_and_b32 v10, 31, v{vL}")
        a(f"v_lshrrev_b32 v11, 5, v{vL}")
        a(f"v_bfe_u32 v12, v{vL}, 1, 3")
        a(f"v_xor_b32 v12, v12, v11")
        a(f"v_lshlrev_b32 v12, 4, v12")
        a(f"v_lshl_add_u32 v12, v10, 7, v12")
        a(f"s_lshl_b32 s{sT0}, s{sW}, 12")
        a(f"s_add_u32 s{sT0}, s{sT0}, {STAGE[0]}")
        a(f"s_xor_b32 s{sT1}, s{sW}, 1")
        a(f"s_lshl_b32 s{sT1}, s{sT1}, 12")
        a(f"s_add_u32 s{sT1}, s{sT1}, {STAGE[0]}")
        for t in range(4):
            a(f"v_xor_b32 v13, {32 * t}, v12")
            a(f"v_add_u32 v{vXA + t}, s{sT0}, v13")
            a(f"v_add_u32 v{vXB + t}, s{sT1}, v13")
        a(f"v_bfe_u32 v13, v{vL}, 2, 2")
        a(f"v_bfe_u32 v14, v{vL}, 4, 1")
        a(f"v_lshlrev_b32 v14, 5, v14")
        a(f"v_and_b32 v15, 3, v{vL}")
        a(f"v_lshl_add_u32 v14, v15, 3, v14")
        a(f"v_lshl_add_u32 v15, v11, 3, v13")
        if role == "ffn":
            a(f"v_mul_u32_u24 v15, 448, v15")
            a(f"v_add_u32 v15, v15, v14")
            a(f"v_add_u32 v{vW3}, {STAGE[0] + 16384 + 192}, v15")
            a(f"s_lshl_b32 s{sT0}, s{sCH}, 8")
            a(f"s_add_u32 s{sT0}, s{sT0}, {STAGE[0] + 16384}")
            a(f"v_add_u32 v{vW}, s{sT0}, v15")
        else:
            a(f"v_lshl_add_u32 v15, v15, 7, v14")
            a(f"v_lshrrev_b32 v9, 1, v13")
            a(f"v_xor_b32 v9, s{sCH}, v9")
            a(f"v_lshl_add_u32 v15, v9, 6, v15")
            a(f"v_add_u32 v{vW}, {STAGE[0] + 16384}, v15")
            a(f"v_lshrrev_b32 v9, 2, v{vL}")
            a(f"v_xor_b32 v9, v9, v5")
            a(f"v_and_b32 v9, 1, v9")
            a(f"v_lshlrev_b32 v9, 10, v9")
            a(f"v_lshl_add_u32 v9, v11, 4, v9")
            a(f"v_add_u32 v{vW3}, {L_T0}, v9")
            for r in range(TMP, TMP + 4):
                a(f"v_mov_b32 v{r}, 0")
            a(f"v_add_u32 v9, {L_T0 + 1024}, v{vL16}")
            a(f"ds_write_b128 v9, {vr(TMP)}", "zero")
        a(f"v_lshl_add_u32 v15, v11, 2, v13")
        a(f"v_lshl_add_u32 v15, v15, 7, v14")
        a(f"v_lshrrev_b32 v9, 1, v13")
        a(f"v_lshl_add_u32 v15, v9, 6, v15")
        a(f"v_add_u32 v{vTA}, s{sBA}, v15")
        a(f"v_add_u32 v{vTB}, s{sBB}, v15")
        a(f"v_xor_b32 v15, 64, v15")
        a(f"v_add_u32 v{vTA + 1}, s{sBA}, v15")
        a(f"v_add_u32 v{vTB + 1}, s{sBB}, v15")
        nacc = 112 if role == "ffn" else 100
        for r in range(ACC, ACC + nacc):
            a(f"v_mov_b32 v{r}, 0")
        a(f"s_mov_b32 s{sCNT}, 6")

    def reads(self, role, t):
        p = t & 1
        w = WF + 16 * p
        if role == "ffn":
            tr = lambda i, j: (f"ds_read_b64_tr_b16 {vr(w + 4 * i + 2 * j, 2)}, v{vW if i < 3 else vW3} "
                               f"offset:{t * 7168 + j * 1792 + (64 * i if i < 3 else 0)}")
            last = [tr(3, 0), tr(3, 1)]
        else:
            tr = lambda i, j: (f"ds_read_b64_tr_b16 {vr(w + 4 * i + 2 * j, 2)}, v{vW} "
                               f"offset:{t * 6144 + i * 2048 + j * 512}")
            last = [f"ds_read_b128 {vr(w + 12)}, v{vW3} offset:{32 * t}"]
        return [[(f"ds_read_b128 {vr(XA + 4 * p)}, v{vXA + t}", "r0"), (tr(0, 0), "r0")],
                [(tr(0, 1), "r0"), (f"ds_read_b128 {vr(XB + 4 * p)}, v{vXB + t}", "r0")],
                [(tr(1, 0), "r0"), (tr(1, 1), "r0")],
                [(tr(2, 0), "r1"), (tr(2, 1), "r1")],
                [(x, "r1") for x in last]]

    def mfmas(self, role, t):
        p = t & 1
        w = WF + 16 * p
        xa, xb = vr(XA + 4 * p), vr(XB + 4 * p)
        out = []
        for k in range(6):
            d = vr(ACC + 16 * k, 16)
            x = xb if k & 1 else xa
            wf = vr(w + 4 * (k >> 1))
            if role == "att" and k < 4:
                out.append(f"v_mfma_f32_32x32x16_bf16 {d}, {x}, {wf}, {d}")
            else:
                out.append(f"v_mfma_f32_32x32x16_bf16 {d}, {wf}, {x}, {d}")
        if role == "ffn":
            d = vr(ACC + 96, 16)
            out.append(f"v_mfma_f32_32x32x16_bf16 {d}, {vr(w + 12)}, {xa}, {d}")
        else:
            d = vr(ACC + 96, 4)
            out.append(f"v_mfma_f32_16x16x32_bf16 {d}, {vr(w + 12)}, {xa}, {d}")
        return out

    def retag(self, q, old, new):
        return [(new if t == old else t, d, s) for t, d, s in q]

    def part_q(self, role, slots, tag, rotate):
        a = self.a
        slots = list(slots)
        pos = [(0, 1), (0, 3), (0, 5), (0, 6), (1, 1), (1, 3), (1, 5), (1, 6), (2, 1), (2, 3), (2, 5), (2, 6)]
        place = dict(zip(pos, slots))
        assert len(slots) <= len(pos)
        upd = {}
        if rotate:
            add = lambda r: f"v_add_u32 v{r}, s{sDA}, v{r}"
            upd[(0, 0)] = [add(vXA)]
            upd[(0, 2)] = [add(vXB)]
            upd[(0, 4)] = [add(vXA + 1), add(vXB + 1)]
            upd[(1, 4)] = [add(vXA + 2), add(vXB + 2)]
            upd[(2, 4)] = [add(vXA + 3), add(vXB + 3)]
            upd[(2, 5)] = [add(vW)]
            upd[(2, 6)] = [add(vW3) if role == "ffn" else f"v_add_u32 v{vW3}, 128, v{vW3}"]
        for t in range(3):
            rd = self.reads(role, t + 1)
            a.lg = self.retag(self.retag(a.lg, "r0", "o0"), "r1", "o1")
            for g, m in enumerate(self.mfmas(role, t)):
                if g == 0:
                    a.wait_lg("o0")
                if g == 4:
                    a.wait_lg("o1")
                a(m)
                sl = place.get((t, g), [])
                pre = [x for x in sl if x.startswith("s_") and "m0" in x]
                for x in pre:
                    a(x)
                if g < 5:
                    for x, tg in rd[g]:
                        a(x, tg)
                for x in sl:
                    if x not in pre:
                        if isinstance(tag, dict):
                            a(x, tag[id(sl)])
                        else:
                            a(x, tag)
                for x in upd.get((t, g), []):
                    a(x)

    def part_p(self, role, wait_tags, nxt, tail=()):
        a = self.a
        rd = self.reads(role, 0) if nxt else [[]] * 5
        tail = list(tail)
        a.wait_all(vm=False)
        for g, m in enumerate(self.mfmas(role, 3)):
            a(m)
            if g == 1:
                a.wait_vm(*wait_tags)
                a("s_barrier")
            if 1 <= g <= 5:
                for x, tg in rd[g - 1]:
                    a(x, tg)
            if g >= 2 and tail:
                for x in tail.pop(0):
                    a(x)
        assert not tail

    def b_slot(self, b):
        s = b % NB_REG
        if s < 8:
            return f"s{sBA}", 2048 * s
        if s < 13:
            return f"s{sBB}", 2048 * (s - 8)
        return f"s{sBB}", REGC - REGB + 2048 * (s - 13)

    def b_dma(self, b):
        base, off = self.b_slot(b)
        rs = srd(SW2 if b < 28 else SWO)
        pre = []
        if b == 28:
            pre = [f"s_lshl_b32 s{sOB}, s{sW}, 17", f"s_lshl_b32 s{sT3}, s{sCC}, 7", f"s_add_u32 s{sOB}, s{sOB}, s{sT3}"]
        return [pre + [f"s_add_u32 m0, {base}, {off}", f"buffer_load_dwordx4 v{vDB}, {rs}, s{sOB} offen lds"],
                [f"buffer_load_dwordx4 v{vDB + 1}, {rs}, s{sOB} offen offset:1024 lds",
                 f"s_add_u32 s{sOB}, s{sOB}, 16384"]]

    def b_reads(self, b, dst):
        s = b % NB_REG
        if s < 8:
            base, off = vTA, 2048 * s
        elif s < 13:
            base, off = vTB, 2048 * (s - 8)
        else:
            base, off = vTB, REGC - REGB + 2048 * (s - 13)
        return [f"ds_read_b64_tr_b16 {dst(4 * ct + 2 * j)}, v{base + ct} offset:{off + 1024 * j}"
                for ct in range(2) for j in range(2)]

    def emit_b_dma(self, b):
        a = self.a
        if b >= NB_REG:
            a.wait_lg(f"M{b - NB_REG}")
        for sl in self.b_dma(b):
            for x in sl:
                a(x, f"B{b}")

    def emit_b_move(self, b):
        a = self.a
        a.wait_vm(f"B{b}")
        for x in self.b_reads(b, lambda o: ar(8 * b + o, 2)):
            a(x, f"M{b}")

    def main_loop(self, role):
        a = self.a
        a.wait_lg("zero")
        a.wait_vm("S0")
        a("s_barrier")
        self.ts(1)
        for grp in self.reads(role, 0):
            for x, tg in grp:
                a(x, tg)
        loop = f"L_loop_{role}"
        sig0 = a.sig()
        start = len(a.out)
        a.label(loop)
        self.part_q(role, self.stage_items(role), "N", True)
        rot = [[f"s_add_u32 s{sMX}, s{sMX}, s{sDC}", f"s_add_u32 s{sMW}, s{sMW}, s{sDC}"],
               [f"s_mov_b32 s{sT0}, s{sDA}", f"s_mov_b32 s{sDA}, s{sDB}"],
               [f"s_mov_b32 s{sDB}, s{sDC}", f"s_mov_b32 s{sDC}, s{sT0}"],
               [f"s_sub_u32 s{sCNT}, s{sCNT}, 1", f"s_cmp_lg_u32 s{sCNT}, 0"]]
        self.part_p(role, ["S"], True, rot)
        a.raw(f"s_cbranch_scc1 {loop}")
        a.check_backedge(start)
        a.vm = self.retag(a.vm, "N", "S")
        if not self.diag:
            assert a.sig() == sig0, (a.sig(), sig0)
        for it in range(2):
            slots, tags = [], {}
            for b in range(6 * it, 6 * it + 6):
                for sl in self.b_dma(b):
                    slots.append(sl)
                    tags[id(sl)] = f"B{b}"
            if it == 0:
                a(f"buffer_load_dword v{vNO}, v{vZ}, {srd(SDBG)}, 0 offen sc1", "nonce")
            self.part_q(role, slots, tags, it == 0)
            self.part_p(role, ["S"], it == 0)
        self.ts(2)

    def spin(self, check, reload, branch_ok, branch_retry):
        a = self.a
        done, retry = self.lab("ok"), self.lab("retry")
        for x in check:
            a(x)
        a.raw(f"{branch_ok} {done}")
        a.label(retry)
        a.raw(f"s_sub_u32 s{sSPIN}, s{sSPIN}, 1")
        a.raw(f"s_cmp_lt_i32 s{sSPIN}, 0")
        a.raw(f"s_cbranch_scc1 {done}")
        a.raw(reload)
        a.raw("s_waitcnt vmcnt(0)")
        for x in check:
            a.raw(x)
        a.raw(f"{branch_retry} {retry}")
        a.label(done)

    def get_nonce(self):
        self.spin([f"v_readfirstlane_b32 s{sNON}, v{vNO}", f"s_cmp_lg_u32 s{sNON}, 0"],
                  f"buffer_load_dword v{vNO}, v{vZ}, {srd(SDBG)}, 0 offen sc1", "s_cbranch_scc1", "s_cbranch_scc0")

    def poll_load(self, soff):
        return f"buffer_load_dword v{vFL}, v{vPA}, {srd(SWS)}, s{soff} offen sc1"

    def poll_check(self, soff):
        self.spin([f"v_cmp_ne_u32 vcc, s{sNON}, v{vFL}"], self.poll_load(soff), "s_cbranch_vccz", "s_cbranch_vccnz")

    def set_flag(self, soff):
        a = self.a
        a("s_mov_b64 exec, 1")
        a(f"buffer_store_dword v{vNO}, v{vZ}, {srd(SWS)}, s{soff} offen sc1", "flag")
        a("s_mov_b64 exec, -1")

    def ffn_epilogue(self):
        a = self.a
        a(f"s_lshl_b32 s{sT0}, s{sRB}, 2")
        a(f"s_add_u32 s{sT1}, s{sT0}, s{sW}")
        a(f"s_xor_b32 s{sT2}, s{sT1}, 1")
        a(f"s_mul_i32 s{sT1}, s{sT1}, {144 * K}")
        a(f"s_mul_i32 s{sT2}, s{sT2}, {144 * K}")
        a(f"s_mul_i32 s{sT0}, s{sCOL}, {14 * K}")
        a(f"s_add_u32 s{sT0}, s{sT0}, {WS_A}")
        a(f"s_add_u32 s{sH3}, s{sT1}, s{sT0}")
        a(f"s_lshl_b32 s{sT3}, s{sCH}, 13")
        a(f"s_add_u32 s{sHA}, s{sH3}, s{sT3}")
        a(f"s_add_u32 s{sHB}, s{sT2}, s{sT0}")
        a(f"s_add_u32 s{sHB}, s{sHB}, s{sT3}")
        a(f"s_add_u32 s{sH3}, s{sH3}, {6 * K}")
        moves = {n: [n] for n in range(8)}
        moves.update({8: [8, 9], 9: [10, 11], 10: [12, 13], 11: [14, 15], 12: [16], 13: [17]})
        for n in range(14):
            k, half = n >> 1, n & 1
            src = ACC + 16 * k + 8 * half
            t = TMP + 8 * (n & 1)
            o = TMP + 16 + 4 * (n % 3)
            self.emit_b_dma(12 + n)
            for i in range(4):
                a(f"v_pk_mul_f32 {vr(t + 2 * i, 2)}, {vr(src + 2 * i, 2)}, {sp(cNL2E)}")
            for i in range(8):
                a(f"v_exp_f32 v{t + i}, v{t + i}")
            for i in range(4):
                a(f"v_pk_add_f32 {vr(t + 2 * i, 2)}, {vr(t + 2 * i, 2)}, {sp(cONE)}")
            for b in moves[n]:
                self.emit_b_move(b)
            for i in range(8):
                a(f"v_rcp_f32 v{t + i}, v{t + i}")
            for i in range(4):
                a(f"v_pk_mul_f32 {vr(t + 2 * i, 2)}, {vr(t + 2 * i, 2)}, {vr(src + 2 * i, 2)}")
            for i in range(4):
                a(f"v_cvt_pk_bf16_f32 v{o + i}, v{t + 2 * i}, v{t + 2 * i + 1}")
            if n == 8:
                a(f"s_add_u32 s{sHA}, s{sHA}, 4096")
                a(f"s_add_u32 s{sHB}, s{sHB}, 4096")
            so = sH3 if k == 6 else (sHB if k & 1 else sHA)
            off = 1024 * half + (2048 if k in (2, 3) else 0)
            a(f"buffer_store_dwordx4 {vr(o)}, v{vL16}, {srd(SWS)}, s{so} offen offset:{off} sc1", "H")
        self.ts(3)
        self.get_nonce()
        nb = 26
        for _ in range(self.cfg["pre_flag"]):
            self.emit_b_dma(nb)
            nb += 1
        a(f"s_lshl_b32 s{sT0}, s{sRB}, 1")
        a(f"s_add_u32 s{sT0}, s{sT0}, s{sRH}")
        a(f"s_lshl_b32 s{sT0}, s{sT0}, 3")
        a(f"s_add_u32 s{sT0}, s{sT0}, s{sCOL}")
        a(f"s_lshl_b32 s{sT0}, s{sT0}, 1")
        a(f"s_add_u32 s{sT0}, s{sT0}, s{sCH}")
        a(f"s_lshl_b32 s{sT0}, s{sT0}, 7")
        a(f"s_add_u32 s{sT0}, s{sT0}, {WS_HF}")
        a.wait_vm("H")
        self.set_flag(sT0)
        self.ts(4)
        return nb

    def phi(self, src, dst, n, bg):
        a = self.a
        t = TMP + 16 * (n & 1)
        u = t + 8
        for i in range(4):
            a(f"v_pk_mul_f32 {vr(t + 2 * i, 2)}, {vr(src + 2 * i, 2)}, {sp(cL2E)}")
        for i in range(4):
            a(f"v_pk_add_f32 {vr(u + 2 * i, 2)}, {vr(src + 2 * i, 2)}, {sp(cEPS)}")
        for i in range(8):
            a(f"v_exp_f32 v{t + i}, v{t + i} clamp")
        for f in bg:
            f()
        for i in range(8):
            a(f"v_max_f32 v{u + i}, s{cEPS}, v{u + i}")
        for i in range(4):
            a(f"v_pk_add_f32 {vr(t + 2 * i, 2)}, {vr(t + 2 * i, 2)}, {vr(u + 2 * i, 2)}")
        for i in range(4):
            a(f"v_cvt_pk_bf16_f32 v{dst + i}, v{t + 2 * i}, v{t + 2 * i + 1}")

    def att_epilogue(self):
        a = self.a
        KA, VA, QA, LG = ACC, ACC + 32, ACC + 64, ACC + 96
        PK, PV, ONES, KV, ZZ, MM = 128, 144, 160, 16, 32, 48
        G, GB, GO = 164, 165, 166
        a0, a1, a2, a3, a4, a5, a6, a7 = range(vM, vM + 8)
        dma = lambda b: (lambda: self.emit_b_dma(b))
        mov = lambda b: (lambda: self.emit_b_move(b))
        for n in range(4):
            bg = [dma(12 + n), mov(n)]
            self.phi(KA + 8 * n, PK + 4 * n, n, bg)
        for i in range(16):
            a(f"v_cvt_pk_bf16_f32 v{PV + i}, v{VA + 2 * i}, v{VA + 2 * i + 1}")
        for i in range(4):
            a(f"v_mov_b32 v{ONES + i}, 0x3f803f80")
        a(f"v_and_b32 v10, 31, v{vL}")
        a(f"v_lshrrev_b32 v11, 5, v{vL}")
        a(f"v_and_b32 v12, 15, v{vL}")
        fill = [
            f"v_mul_f32 v{G}, s{cNL2E}, v{LG}",
            f"v_lshlrev_b32 v13, 8, v11",
            f"v_exp_f32 v{G}, v{G}",
            f"v_lshl_add_u32 v13, v12, 4, v13",
            f"s_lshl_b32 s{sT0}, s{sW}, 11",
            f"v_add_f32 v{G}, 1.0, v{G}",
            f"s_add_u32 s{sT0}, s{sT0}, {L_SCR}",
            f"v_rcp_f32 v{G}, v{G}",
            f"v_add_u32 v13, s{sT0}, v13",
            f"s_lshl_b32 s{sT0}, s{sW}, 6",
            f"s_add_u32 s{sT0}, s{sT0}, {L_T1}",
            f"v_lshl_add_u32 v14, v11, 4, s{sT0}",
            f"v_cndmask_b32 v{a0}, v13, v14, {sp(cM16)}",
            f"v_add_u32 v13, 1024, v13",
            f"v_add_u32 v14, 32, v14",
            f"v_cndmask_b32 v{a1}, v14, v13, {sp(cM16)}",
            f"s_lshl_b32 s{sT0}, s{sW}, 7",
            f"s_add_u32 s{sT0}, s{sT0}, {L_T1 + 1024}",
            f"v_lshl_add_u32 v{a2}, v10, 2, s{sT0}",
            f"ds_write_b32 v{a2}, v{G}",
            f"v_xor_b32 v{a2}, 128, v{a2}",
        ]
        for n in range(4):
            c = "0" if n == 0 else None
            a(f"v_mfma_f32_32x32x16_bf16 {vr(KV, 16)}, {vr(PK + 4 * n)}, {vr(PV + 4 * n)}, {c or vr(KV, 16)}")
            for x in fill[:3]:
                a(x)
            fill = fill[3:]
            a(f"v_mfma_f32_32x32x16_bf16 {vr(ZZ, 16)}, {vr(PK + 4 * n)}, {vr(ONES)}, {c or vr(ZZ, 16)}")
            for x in fill[:3]:
                a(x)
            fill = fill[3:]
        assert not fill
        a(f"s_lshl_b32 s{sT1}, s{sCH}, 1")
        a(f"s_add_u32 s{sT1}, s{sT1}, s{sRH}")
        a(f"s_lshl_b32 s{sT0}, s{sT1}, 10")
        a(f"s_add_u32 s{sT0}, s{sT0}, {L_SCR}")
        a(f"v_add_u32 v{a3}, s{sT0}, v{vL16}")
        a(f"s_lshl_b32 s{sT0}, s{sT1}, 5")
        a(f"s_add_u32 s{sT0}, s{sT0}, {L_T1}")
        a(f"v_bfe_u32 v13, v{vL}, 3, 1")
        a(f"v_lshlrev_b32 v13, 9, v13")
        a(f"v_and_b32 v14, 7, v{vL}")
        a(f"v_lshl_add_u32 v13, v14, 2, v13")
        a(f"v_add_u32 v{a4}, s{sT0}, v13")
        for r in range(8):
            a(f"v_cndmask_b32 v{MM + r}, v{KV + r}, v{ZZ + r}, {sp(cM16)}")
        for r in range(8):
            a(f"v_cndmask_b32 v{MM + 8 + r}, v{ZZ + 8 + r}, v{KV + 8 + r}, {sp(cM16)}")
        for h in range(2):
            for q in range(2):
                a(f"ds_write_b128 v{a0 + h}, {vr(MM + 8 * h + 4 * q)} offset:{512 * q}")
        a(f"s_lshl_b32 s{sT2}, s{sCOL}, 2")
        a(f"s_add_u32 s{sT2}, s{sT2}, s{sT1}")
        a(f"s_lshl_b32 s{sT2}, s{sT2}, 4")
        a(f"s_mul_i32 s{sA0}, s{sT2}, 1152")
        a(f"s_add_u32 s{sA0}, s{sA0}, {WS_KV}")
        a(f"s_lshl_b32 s{sA1}, s{sT2}, 7")
        a(f"s_add_u32 s{sA1}, s{sA1}, {WS_KVF}")
        a(f"s_mul_i32 s{sT0}, s{sRB}, 1152")
        a(f"s_add_u32 s{sT0}, s{sT0}, s{sA0}")
        a(f"v_lshlrev_b32 v{a5}, 2, v12")
        a(f"v_add_u32 v{a5}, 1024, v{a5}")
        a(f"s_lshl_b32 s{sT3}, s{sRH}, 8")
        a(f"s_add_u32 s{sT3}, s{sT3}, {L_T1 + 1024}")
        a(f"v_lshl_add_u32 v13, v{vL}, 2, s{sT3}")
        a.wait_all(vm=False)
        a("s_barrier")
        a(f"ds_read_b128 {vr(64)}, v{a3}")
        a(f"ds_read_b128 {vr(68)}, v{a3} offset:4096")
        a(f"ds_read_b32 v72, v{a4}")
        a(f"ds_read_b32 v73, v{a4} offset:128")
        a(f"ds_read_b32 v{GB}, v{a2}")
        a(f"ds_read_b32 v{GO}, v13")
        self.get_nonce()
        a(f"v_pk_add_f32 {vr(64, 2)}, {vr(64, 2)}, {vr(68, 2)}")
        a(f"v_pk_add_f32 {vr(66, 2)}, {vr(66, 2)}, {vr(70, 2)}")
        a(f"v_add_f32 v72, v72, v73")
        a(f"buffer_store_dwordx4 {vr(64)}, v{vL16}, {srd(SWS)}, s{sT0} offen sc1", "KV")
        a("s_mov_b64 exec, 0xffff")
        a(f"buffer_store_dword v72, v{a5}, {srd(SWS)}, s{sT0} offen sc1", "KV")
        a("s_mov_b64 exec, -1")
        self.ts(3)
        PQ = 128
        self.phi(QA, PQ, 0, [dma(16), mov(4)])
        self.phi(QA + 8, PQ + 4, 1, [dma(17), mov(5)])
        a(f"s_lshl_b32 s{sT0}, s{sRB}, 7")
        a(f"s_add_u32 s{sT0}, s{sT0}, s{sA1}")
        a.wait_vm("KV")
        self.set_flag(sT0)
        self.ts(4)
        a(f"v_lshlrev_b32 v{vPA}, 7, v12")
        self.phi(QA + 16, PQ + 8, 2, [dma(18), mov(6), mov(7)])
        self.phi(QA + 24, PQ + 12, 3, [dma(19), mov(8), mov(9)])
        a(self.poll_load(sA1), "poll")
        a(f"s_mul_i32 s{sT0}, s{sT1}, 576")
        a(f"s_add_u32 s{sT0}, s{sT0}, {L_T1 + 1536}")
        a(f"v_lshlrev_b32 v13, 4, v10")
        a(f"v_lshl_add_u32 v13, v11, 3, v13")
        a(f"v_add_u32 v{a0}, s{sT0}, v13")
        a(f"v_bfe_u32 v13, v{vL}, 2, 1")
        a(f"v_lshlrev_b32 v13, 4, v13")
        a(f"v_bfe_u32 v14, v{vL}, 3, 1")
        a(f"v_lshl_add_u32 v13, v14, 3, v13")
        a(f"v_and_b32 v14, 3, v{vL}")
        a(f"v_lshl_add_u32 v13, v14, 1, v13")
        a(f"s_add_u32 s{sT0}, s{sT0}, 512")
        a(f"v_add_u32 v{a1}, s{sT0}, v13")
        a(f"s_mul_i32 s{sT0}, s{sCH}, 1152")
        a(f"s_add_u32 s{sT0}, s{sT0}, {L_T1 + 1536}")
        a(f"v_lshlrev_b32 v13, 8, v11")
        a(f"v_lshl_add_u32 v13, v12, 4, v13")
        a(f"v_lshlrev_b32 v14, 4, v11")
        a(f"v_add_u32 v14, 512, v14")
        a(f"v_cndmask_b32 v13, v13, v14, {sp(cM16)}")
        a(f"v_add_u32 v{a3}, s{sT0}, v13")
        a(f"v_sub_f32 v{GO}, 1.0, v{GO}")
        for b in (10, 11):
            self.emit_b_move(b)
        self.poll_check(sA1)
        self.ts(5)
        P0, Z0 = 16, 96
        for p in range(16):
            a(f"buffer_load_dwordx4 {vr(P0 + 4 * p)}, v{vL16}, {srd(SWS)}, s{sA0} offen offset:{1152 * (p % 4)} sc1")
            a("s_mov_b64 exec, 0xffff")
            a(f"buffer_load_dword v{Z0 + p}, v{a5}, {srd(SWS)}, s{sA0} offen offset:{1152 * (p % 4)} sc1")
            a("s_mov_b64 exec, -1")
            if p % 4 == 3:
                a(f"s_add_u32 s{sA0}, s{sA0}, 4608")
        for b in (20, 21, 22, 23):
            self.emit_b_dma(b)
        for p in range(1, 16):
            a(f"v_pk_add_f32 {vr(P0, 2)}, {vr(P0, 2)}, {vr(P0 + 4 * p, 2)}")
            a(f"v_pk_add_f32 {vr(P0 + 2, 2)}, {vr(P0 + 2, 2)}, {vr(P0 + 4 * p + 2, 2)}")
            a(f"v_add_f32 v{Z0}, v{Z0}, v{Z0 + p}")
        a(f"v_cvt_pk_bf16_f32 v{P0}, v{P0}, v{P0 + 1}")
        a(f"v_cvt_pk_bf16_f32 v{P0 + 1}, v{P0 + 2}, v{P0 + 3}")
        a(f"v_cvt_pk_bf16_f32 v{Z0}, v{Z0}, v{Z0}")
        a(f"ds_write_b64 v{a0}, {vr(P0, 2)}")
        a("s_mov_b64 exec, 0xffff")
        a(f"ds_write_b16 v{a1}, v{Z0}")
        a("s_mov_b64 exec, -1")
        a(f"s_lshl_b32 s{sT0}, s{sRB}, 2")
        a(f"s_add_u32 s{sT1}, s{sT0}, s{sW}")
        a(f"s_xor_b32 s{sT2}, s{sT1}, 1")
        a(f"s_mul_i32 s{sHA}, s{sT1}, {144 * K}")
        a(f"s_mul_i32 s{sHB}, s{sT2}, {144 * K}")
        a(f"s_lshl_b32 s{sT0}, s{sCOL}, 1")
        a(f"s_add_u32 s{sT0}, s{sT0}, s{sCH}")
        a(f"s_lshl_b32 s{sT1}, s{sT0}, 11")
        a(f"s_add_u32 s{sT1}, s{sT1}, {WS_A + 112 * K}")
        a(f"s_add_u32 s{sHA}, s{sHA}, s{sT1}")
        a(f"s_add_u32 s{sHB}, s{sHB}, s{sT1}")
        a(f"s_lshl_b32 s{sT0}, s{sT0}, 13")
        a(f"s_lshl_b32 s{sT1}, s{sRB}, 9")
        a(f"s_add_u32 s{sT0}, s{sT0}, s{sT1}")
        a(f"s_lshl_b32 s{sT1}, s{sRH}, 8")
        a(f"s_add_u32 s{sT0}, s{sT0}, s{sT1}")
        a(f"s_add_u32 s{sH3}, s{sT0}, {WS_OMG}")
        a(f"v_lshlrev_b32 v{a4}, 2, v{vL}")
        a.wait_all(vm=False)
        a("s_barrier")
        F = 144
        a(f"ds_read_b128 {vr(F)}, v{a3}")
        a(f"ds_read_b128 {vr(F + 4)}, v{a3} offset:576")
        a(f"buffer_store_dword v{GO}, v{a4}, {srd(SWS)}, s{sH3} offen sc1", "O")
        for n in range(4):
            rf, h = n >> 1, n & 1
            a(f"v_mfma_f32_32x32x16_bf16 {vr(16 + 16 * n, 16)}, {vr(F + 4 * h)}, {vr(PQ + 8 * rf + 4 * h)}, 0")
        for n in range(4):
            rf, h = n >> 1, n & 1
            d = 16 + 16 * n
            o = TMP + 4 * n
            a(f"v_add_f32 v{d + 8}, s{cEPS}, v{d + 8}")
            a(f"v_rcp_f32 v{d + 8}, v{d + 8}")
            a(f"v_mul_f32 v{d + 8}, v{d + 8}, v{GB if rf else G}")
            for i in range(8):
                a(f"v_mul_f32 v{d + i}, v{d + i}, v{d + 8}")
            for i in range(4):
                a(f"v_cvt_pk_bf16_f32 v{o + i}, v{d + 2 * i}, v{d + 2 * i + 1}")
            a(f"buffer_store_dwordx4 {vr(o)}, v{vL16}, {srd(SWS)}, s{sHB if rf else sHA} offen offset:{1024 * h} sc1", "O")
        self.ts(6)
        for b in range(12, 18):
            self.emit_b_move(b)
        for b in range(24, 28):
            self.emit_b_dma(b)
        a(f"s_lshl_b32 s{sT0}, s{sRB}, 1")
        a(f"s_add_u32 s{sT0}, s{sT0}, s{sRH}")
        a(f"s_lshl_b32 s{sT0}, s{sT0}, 3")
        a(f"s_add_u32 s{sT0}, s{sT0}, s{sCOL}")
        a(f"s_lshl_b32 s{sT0}, s{sT0}, 1")
        a(f"s_add_u32 s{sT0}, s{sT0}, s{sCH}")
        a(f"s_lshl_b32 s{sT0}, s{sT0}, 7")
        a(f"s_add_u32 s{sT0}, s{sT0}, {WS_OF}")
        a.wait_vm("O")
        self.set_flag(sT0)
        return 28

    def a_load(self, b, rf):
        a = self.a
        s = sA0 + rf
        r = b if b < 28 else b - 28
        if b == 28:
            a(f"s_add_u32 s{s}, s{s}, s{sHA}")
        elif r % 4 == 0 and r:
            a(f"s_add_u32 s{s}, s{s}, 4096")
        dst = ar(A_RING + 8 * (b % A_DEPTH) + 4 * rf)
        a(f"buffer_load_dwordx4 {dst}, v{vL16}, {srd(SWS)}, s{s} offen offset:{1024 * (r % 4)} sc1", f"A{b}")

    def phase2(self, nb):
        a = self.a
        OM, BB = 80, 144
        a(f"v_and_b32 v{vPA}, 3, v{vL}")
        a(f"v_lshlrev_b32 v{vPA}, 7, v{vPA}")
        a(f"s_lshl_b32 s{sT0}, s{sRT}, 2")
        a(f"s_add_u32 s{sT0}, s{sT0}, s{sW}")
        a(f"s_lshl_b32 s{sT0}, s{sT0}, 9")
        a(f"s_add_u32 s{sT1}, s{sT0}, {WS_HF}")
        a(f"s_add_u32 s{sHB}, s{sT0}, {WS_OF}")
        a(self.poll_load(sT1), "poll")
        while nb < 36:
            self.emit_b_dma(nb)
            nb += 1
        a(f"s_mul_i32 s{sA0}, s{sRT}, {288 * K}")
        a(f"s_mul_i32 s{sT0}, s{sW}, {28 * K}")
        a(f"s_add_u32 s{sA0}, s{sA0}, s{sT0}")
        a(f"s_add_u32 s{sA0}, s{sA0}, {WS_A}")
        a(f"s_add_u32 s{sA1}, s{sA0}, {144 * K}")
        a(f"s_mul_i32 s{sT0}, s{sW}, {20 * K}")
        a(f"s_sub_u32 s{sHA}, {88 * K}, s{sT0}")
        a(f"s_lshl_b32 s{sT0}, s{sW}, 15")
        a(f"s_lshl_b32 s{sT2}, s{sRT}, 8")
        a(f"s_add_u32 s{sT0}, s{sT0}, s{sT2}")
        a(f"s_add_u32 s{sH3}, s{sT0}, {WS_OMG}")
        a(f"s_lshl_b32 s{sT0}, s{sW}, 8")
        a(f"s_add_u32 s{sT0}, s{sT0}, {L_T0}")
        a(f"v_lshlrev_b32 v{vM}, 2, v{vL}")
        a(f"v_add_u32 v{vM + 1}, s{sT0}, v{vM}")
        a(f"v_lshrrev_b32 v11, 5, v{vL}")
        a(f"v_lshl_add_u32 v{vM + 2}, v11, 4, s{sT0}")
        self.poll_check(sT1)
        self.ts(7)
        for b in range(A_DEPTH):
            self.a_load(b, 0)
            self.a_load(b, 1)
        for b in range(36):
            if b == 28 - A_DEPTH:
                a(self.poll_load(sHB), "poll")
                self.poll_check(sHB)
                self.ts(8)
                a(f"buffer_load_dword v{vM + 3}, v{vM}, {srd(SWS)}, s{sH3} offen sc1")
            if b == 26:
                a(f"ds_write_b32 v{vM + 1}, v{vM + 3}", "om")
                a.wait_lg("om")
                for rf in range(2):
                    for q in range(4):
                        a(f"ds_read_b128 {vr(OM + 16 * rf + 4 * q)}, v{vM + 2} offset:{128 * rf + 32 * q}")
            if b == 28:
                for n in range(4):
                    for i in range(8):
                        d = vr(ACC + 16 * n + 2 * i, 2)
                        a(f"v_pk_mul_f32 {d}, {d}, {vr(OM + 16 * (n >> 1) + 2 * i, 2)}")
            nxt = []
            if NB_REG <= b + 1 < 36:
                a.wait_vm(f"B{b + 1}")
                nxt = self.b_reads(b + 1, lambda o: vr(BB + 8 * ((b + 1) & 1) + o, 2))
            for n in range(4):
                rf, ct = n >> 1, n & 1
                d = vr(ACC + 16 * n, 16)
                af = ar(A_RING + 8 * (b % A_DEPTH) + 4 * rf)
                bf = ar(8 * b + 4 * ct) if b < NB_REG else vr(BB + 8 * (b & 1) + 4 * ct)
                a(f"v_mfma_f32_32x32x16_bf16 {d}, {af}, {bf}, {d if b else 0}")
                if n < 2:
                    for x in nxt[2 * n:2 * n + 2]:
                        a(x)
                if ct == 1 and b + A_DEPTH < 36:
                    self.a_load(b + A_DEPTH, rf)
        self.ts(9)
        a(f"s_mov_b32 m0, s{sBA}")
        a(f"s_lshl_b32 s{sT0}, s{sRH}, 13")
        a(f"s_lshl_b32 s{sT1}, s{sCH}, 11")
        a(f"s_add_u32 s{sT0}, s{sT0}, s{sT1}")
        a(f"v_add_u32 v{vM}, s{sT0}, v{vL16}")
        a(f"v_bfe_u32 v10, v{vL}, 3, 1")
        a(f"v_lshrrev_b32 v11, 4, v{vL}")
        a(f"v_lshl_add_u32 v10, v10, 2, v11")
        a(f"v_and_b32 v11, 7, v{vL}")
        a(f"v_lshlrev_b32 v11, 3, v11")
        a(f"v_lshl_add_u32 v{vM + 1}, v10, 10, v11")
        a(f"s_lshl_b32 s{sT0}, s{sRT}, 16")
        a(f"s_lshl_b32 s{sT1}, s{sW}, 14")
        a(f"s_add_u32 s{sT0}, s{sT0}, s{sT1}")
        a(f"s_lshl_b32 s{sT1}, s{sCC}, 7")
        a(f"s_add_u32 s{sT0}, s{sT0}, s{sT1}")
        a(f"s_add_u32 s{sT1}, s{sT0}, 8192")
        for r in range(64):
            a(f"ds_write_addtid_b32 v{ACC + r} offset:{256 * r}")
        a.wait_all(vm=False)
        a("s_barrier")
        R = 80
        for u in range(4):
            i, ct = u >> 1, u & 1
            for p in range(4):
                a(f"ds_read_b128 {vr(R + 16 * u + 4 * p)}, v{vM} offset:{16384 * p + 4096 * ct + 1024 * i}")
        for u in range(4):
            i, ct = u >> 1, u & 1
            b = R + 16 * u
            for h in range(2):
                a(f"v_pk_add_f32 {vr(b + 2 * h, 2)}, {vr(b + 2 * h, 2)}, {vr(b + 4 + 2 * h, 2)}")
                a(f"v_pk_add_f32 {vr(b + 8 + 2 * h, 2)}, {vr(b + 8 + 2 * h, 2)}, {vr(b + 12 + 2 * h, 2)}")
            for h in range(2):
                a(f"v_pk_add_f32 {vr(b + 2 * h, 2)}, {vr(b + 2 * h, 2)}, {vr(b + 8 + 2 * h, 2)}")
            a(f"v_cvt_pk_bf16_f32 v{b}, v{b}, v{b + 1}")
            a(f"v_cvt_pk_bf16_f32 v{b + 1}, v{b + 2}, v{b + 3}")
            a(f"buffer_store_dwordx2 {vr(b, 2)}, v{vM + 1}, {srd(SOUT)}, s{sT1 if i else sT0} offen offset:{64 * ct}")
        if self.diag:
            a.wait_all()
            self.ts(10)
            a.wait_all()
            for k in range(13):
                a(f"v_mov_b32 v{16 + k}, s{sTS + 2 * k}")
            a(f"v_mov_b32 v29, s{sSPIN}")
            a(f"s_lshl_b32 s{sT0}, s2, 2")
            a(f"s_add_u32 s{sT0}, s{sT0}, s{sW}")
            a(f"s_lshl_b32 s{sT0}, s{sT0}, 6")
            a(f"s_add_u32 s{sT0}, s{sT0}, {WS_TS}")
            a("s_mov_b64 exec, 1")
            for q in range(4):
                a(f"buffer_store_dwordx4 {vr(16 + 4 * q)}, v{vZ}, {srd(SWS)}, s{sT0} offen offset:{16 * q}")
        a("s_endpgm")

    def build(self):
        a = self.a
        self.prologue()
        st = a.state()
        for role in ("ffn", "att"):
            if role == "att":
                a.label("L_att")
                a.set_state(st)
            self.ids(role)
            self.setup(role)
            self.main_loop(role)
            nb = self.ffn_epilogue() if role == "ffn" else self.att_epilogue()
            self.phase2(nb)
        a.label("L_exit")
        head = open("cdna_kernels/" + KNAME[:-7] + ".s.ref").read().split("; Override")[0]
        return (head + "; @launch grid=(256,1,1) block=(256,1,1) lds=163840\n"
                + '.amdgcn_target "amdgcn-amd-amdhsa--gfx950"\n.text\n'
                + f".globl {KNAME}\n.p2align 8\n.type {KNAME},@function\n{KNAME}:\n"
                + a.text() + "  s_endpgm\n"
                + f'.section .rodata,"a"\n.p2align 6\n.amdhsa_kernel {KNAME}\n'
                + "  .amdhsa_next_free_vgpr 512\n  .amdhsa_next_free_sgpr 102\n  .amdhsa_accum_offset 256\n"
                + "  .amdhsa_group_segment_fixed_size 0\n  .amdhsa_kernarg_size 80\n  .amdhsa_user_sgpr_count 2\n"
                + "  .amdhsa_user_sgpr_kernarg_segment_ptr 1\n  .amdhsa_system_sgpr_workgroup_id_x 1\n"
                + "  .amdhsa_float_denorm_mode_32 3\n.end_amdhsa_kernel\n")


if __name__ == "__main__":
    import json
    out = sys.argv[1]
    diag = len(sys.argv) > 2 and sys.argv[2] == "diag"
    cfg = json.loads(sys.argv[3]) if len(sys.argv) > 3 else None
    g = Gen(diag, cfg)
    txt = g.build()
    open(out, "w").write(txt)
    print("instructions", len(g.a.out), "nop states", g.a.nops)
```

```python
import re

TRANS = ("v_exp_f32", "v_log_f32", "v_rcp_f32", "v_rsq_f32", "v_sqrt_f32", "v_sin_f32", "v_cos_f32")
_REG = re.compile(r"^(-|\|)?([vas])(\d+)\|?$")
_RNG = re.compile(r"^(-|\|)?([vas])\[(\d+):(\d+)\]\|?$")


def regs_of(op):
    op = op.strip()
    m = _REG.match(op)
    if m:
        return {(m.group(2), int(m.group(3)))}
    m = _RNG.match(op)
    if m:
        return {(m.group(2), i) for i in range(int(m.group(3)), int(m.group(4)) + 1)}
    if op == "vcc":
        return {("s", "vcc")}
    if op in ("exec", "exec_lo", "exec_hi"):
        return {("s", "exec")}
    if op == "m0":
        return {("s", "m0")}
    return set()


class Ins:
    def __init__(self, text, tag=None):
        self.text = text
        self.tag = tag
        body = text.split(";")[0].strip()
        self.label = body.endswith(":")
        parts = body.split(None, 1)
        self.op = parts[0] if parts else ""
        rest = parts[1] if len(parts) > 1 else ""
        rest = re.sub(r"\s+(op_sel|op_sel_hi|neg_lo|neg_hi):\[[^\]]*\]", "", rest)
        ops = [o.strip() for o in rest.split(",")] if rest else []
        mods = ""
        if ops:
            last = ops[-1].split(None, 1)
            ops[-1] = last[0]
            mods = last[1] if len(last) > 1 else ""
        self.ops, self.mods = ops, mods
        op = self.op
        self.kind = "other"
        self.rd, self.wr = set(), set()
        self.srcc = set()
        self.srcab = set()
        self.passes = 0
        R = [regs_of(o) for o in ops]
        allr = set().union(*R) if R else set()
        if self.label or not op:
            self.kind = "label"
        elif op.startswith("v_mfma"):
            self.kind = "mfma"
            self.passes = 8 if "32x32" in op else 4
            self.wr = R[0]
            self.srcab = R[1] | R[2]
            self.srcc = R[3]
            self.rd = self.srcab | self.srcc
        elif op.startswith("v_"):
            self.kind = "valu"
            if "permlane" in op and "swap" in op:
                self.wr = R[0] | R[1]
                self.rd = R[0] | R[1]
            else:
                self.wr = R[0]
                self.rd = set().union(*R[1:]) if len(R) > 1 else set()
                self.srcab = set(self.rd)
                if op.startswith(("v_fmac", "v_dot2c", "v_writelane", "v_pk_fmac")):
                    self.rd |= R[0]
                if op.startswith(("v_add_co", "v_sub_co", "v_addc_co")):
                    self.wr |= R[1]
        elif op.startswith("ds_"):
            self.kind = "ds"
            if op.startswith("ds_read"):
                self.wr = R[0]
                self.rd = set().union(*R[1:]) if len(R) > 1 else set()
            else:
                self.rd = allr
            if "addtid" in op:
                self.rd |= {("s", "m0")}
        elif op.startswith(("buffer_", "global_")):
            self.kind = "vmem"
            is_lds = re.search(r"\blds\b", mods) is not None
            if "load" in op and not is_lds:
                self.wr = R[0]
                self.rd = set().union(*R[1:])
            else:
                self.rd = allr
            self.store = "store" in op
            self.wide_store = self.store and op.endswith(("x3", "x4"))
            self.data = R[0] if self.store and op.startswith("buffer_") else set()
            if is_lds:
                self.rd |= {("s", "m0")}
        elif op.startswith(("s_load", "s_buffer_load", "s_memtime", "s_memrealtime")):
            self.kind = "smem"
            self.wr = R[0]
            self.rd = set().union(*R[1:]) if len(R) > 1 else set()
        elif op in ("s_waitcnt", "s_barrier", "s_nop", "s_endpgm", "s_setprio", "s_sleep") or op.startswith(
            ("s_cbranch", "s_branch")
        ):
            self.kind = "ctl"
        elif op.startswith("s_"):
            self.kind = "salu"
            if op.startswith(("s_cmp", "s_bitcmp")):
                self.rd = allr
            else:
                self.wr = R[0]
                self.rd = set().union(*R[1:]) if len(R) > 1 else set()
                if "saveexec" in op:
                    self.wr |= {("s", "exec")}
        self.trans = op.startswith(TRANS)
        self.dpp = "quad_perm" in mods or "row_" in mods
        self.states = 1
        if op == "s_nop":
            self.states = int(ops[0], 0) + 1


def need_states(p, c):
    n = 0
    if p.kind == "valu":
        vw = {r for r in p.wr if r[0] in "va"}
        sw = {r for r in p.wr if r[0] == "s"}
        if c.kind == "mfma" and vw & c.rd:
            n = max(n, 2)
        if c.kind == "valu":
            if p.trans and not c.trans and vw & c.rd:
                n = max(n, 1)
            if c.dpp and vw & c.rd:
                n = max(n, 2)
            if "permlane" in c.op and vw & c.rd:
                n = max(n, 2)
            if c.op.startswith(("v_readfirstlane", "v_readlane")) and vw & c.rd:
                n = max(n, 1)
            if sw & c.rd:
                n = max(n, 2)
            if p.op.startswith("v_dot") and vw & (c.rd | c.wr) and not (c.op == p.op and vw == c.wr and not vw & c.srcab):
                n = max(n, 3)
        if c.kind in ("vmem", "ds") and p.op.startswith("v_dot") and vw & c.rd:
            n = max(n, 3)
        if c.kind == "vmem" and sw & c.rd:
            n = max(n, 5)
        if c.kind == "ctl" and c.op.startswith("s_cbranch_vcc") and ("s", "vcc") in sw:
            n = max(n, 5)
    elif p.kind == "mfma":
        big = 12 if p.passes == 8 else 8
        if c.kind == "mfma":
            if p.wr & c.srcab:
                n = max(n, big)
            if p.wr & c.srcc and not (p.wr == c.srcc and p.passes == c.passes):
                n = max(n, big - 2)
            if p.wr & c.wr and not (p.wr == c.srcc and p.passes == c.passes):
                n = max(n, big - 2)
        elif c.kind in ("valu", "ds", "vmem"):
            if p.wr & (c.rd | c.wr):
                n = max(n, big)
            if c.kind == "valu" and p.srcc & c.wr:
                n = max(n, 7 if p.passes == 8 else 3)
    elif p.kind == "salu":
        if ("s", "m0") in p.wr and c.kind in ("vmem", "ds") and ("s", "m0") in c.rd:
            n = max(n, 1)
    elif p.kind == "vmem" and getattr(p, "wide_store", False):
        if p.data & c.wr:
            n = max(n, 2 if c.kind == "valu" else 1)
    return n


class Asm:
    def __init__(self):
        self.out = []
        self.vm = []
        self.lg = []
        self.nops = 0
        self.pipe = False

    def state(self):
        return (list(self.vm), list(self.lg))

    def set_state(self, st):
        self.vm, self.lg = list(st[0]), list(st[1])

    def sig(self):
        return ([(t, tuple(sorted(d, key=str))) for t, d, _ in self.vm],
                [(t, tuple(sorted(d, key=str))) for t, d, _ in self.lg])

    def _gap(self, win, i, ins):
        p = win[i]
        if not self.pipe:
            n = sum(q.states for q in win[i + 1:])
            return n, n
        last = (0, p.passes) if p.kind == "mfma" else None
        cur = 1
        for q in win[i + 1:] + [ins]:
            t = max(cur, last[0] + last[1]) if q.kind == "mfma" and last else cur
            if q.kind == "mfma":
                last = (t, q.passes)
            plain, cur = cur, t + q.states
        return t - 1, plain - 1

    def _emit(self, ins):
        if ins.kind not in ("label",):
            win = [p for p in self.out[-40:] if p.kind != "label"][-20:]
            need = 0
            for i, p in enumerate(win):
                k = need_states(p, ins)
                if k:
                    gap, plain = self._gap(win, i, ins)
                    if gap < k:
                        need = max(need, k - plain)
            while need > 0:
                k = min(need, 16)
                self.out.append(Ins(f"s_nop {k - 1}"))
                self.nops += k
                need -= k
        self.out.append(ins)

    def _wait(self, vm=None, lg=None):
        parts = []
        if vm is not None and vm < len(self.vm):
            assert vm <= 63, vm
            self.vm = self.vm[len(self.vm) - vm:] if vm else []
            parts.append(f"vmcnt({vm})")
        if lg is not None and lg < len(self.lg):
            if any(s for _, _, s in self.lg):
                lg = 0
            lg = min(lg, 15)
            self.lg = self.lg[len(self.lg) - lg:] if lg else []
            parts.append(f"lgkmcnt({lg})")
        if parts:
            self._emit(Ins("s_waitcnt " + " ".join(parts)))

    @staticmethod
    def _younger(q, pred):
        idx = [i for i, e in enumerate(q) if pred(e)]
        return None if not idx else len(q) - 1 - idx[-1]

    def wait_vm(self, *tags):
        n = self._younger(self.vm, lambda e: e[0] in tags)
        if n is not None:
            self._wait(vm=min(n, 63))

    def wait_lg(self, *tags):
        n = self._younger(self.lg, lambda e: e[0] in tags)
        if n is not None:
            self._wait(lg=n)

    def wait_all(self, vm=True, lg=True):
        self._wait(vm=0 if vm else None, lg=0 if lg else None)

    def __call__(self, text, tag=None):
        ins = Ins(text, tag)
        if tag and tag.startswith("PF"):
            ins.wr = set()
        touched = ins.rd | ins.wr
        nv = self._younger(self.vm, lambda e: e[1] & touched)
        nl = self._younger(self.lg, lambda e: e[1] & touched)
        if nv is not None:
            nv = min(nv, 63)
        if nv is not None or nl is not None:
            self._wait(vm=nv, lg=nl)
        if ins.kind == "vmem" and len(self.vm) >= 63:
            self._wait(vm=62)
        self._emit(ins)
        if ins.kind == "vmem":
            self.vm.append((tag, frozenset(ins.wr), False))
        elif ins.kind == "ds":
            self.lg.append((tag, frozenset(ins.wr), False))
        elif ins.kind == "smem":
            self.lg.append((tag, frozenset(ins.wr), True))
        return ins

    def raw(self, text):
        self._emit(Ins(text))

    def label(self, name):
        self.out.append(Ins(name + ":"))

    def check_backedge(self, start_idx):
        body = [i for i in self.out[start_idx:] if i.kind != "label"]
        tail, head = body[-24:], body[:24]
        for hi, c in enumerate(head):
            dist = sum(x.states for x in head[:hi])
            for p in reversed(tail):
                if need_states(p, c) > dist:
                    raise RuntimeError(f"back-edge hazard: {p.text} -> {c.text}")
                dist += p.states

    def text(self):
        lines = []
        for i in self.out:
            lines.append(i.text if i.kind == "label" else "  " + i.text)
        return "\n".join(lines) + "\n"
```

```python
import sys
from asmlib import Asm

KNAME = "gated_mix__linear_attn_block__dense_activation_silu__prompt_kernel"
K = 1024

WS_EPOCH, WS_HF, WS_OF, WS_KVF = 0, 0x10000, 0x20000, 0x30000
WS_OMG, WS_KV, WS_A, WS_TS = 0x40000, 0x80000, 0x200000, 0x1000000
WS_BYTES = 0x1100000

STAGE = [72 * K, 116 * K, 0]
DELTA = [44 * K, -116 * K, 72 * K]
L_SCR, L_T0, L_T1 = 64 * K, 112 * K, 156 * K
REGB, REGC = 72 * K, 116 * K

SX, SW, SW2, SWO, SWS, SOUT, SDBG, SG = 4, 8, 12, 16, 20, 24, 28, 32
sW, sRH, sCH, sRB, sCOL, sRT, sCC = 36, 37, 38, 39, 40, 41, 42
sOX, sOW, sMX, sMW, sCNT = 43, 44, 45, 46, 47
sDA, sDB, sDC = 48, 49, 54
sNON, sOB, sBA, sBB = 50, 51, 52, 53
sT0, sT1, sT2, sT3 = 66, 67, 68, 69
sHA, sHB, sH3, sA0, sA1, sSPIN = 70, 71, 72, 73, 74, 75
cNL2E, cONE, cEPS, cM16, cL2E = 56, 58, 60, 62, 64
sTS = 76

vL, vL16, vZ = 1, 2, 3
ACC = 16
XA, XB, WF = 128, 136, 144
vXA, vXB, vW, vW3 = 176, 180, 184, 185
vDX, vDW, vDB = 186, 190, 197
vTA, vTB = 199, 201
vPA, vFL, vNO = 203, 204, 205
vM = 206
TMP = 216
vTS = 255
NB_REG, A_RING, A_DEPTH = 18, 144, 14


def srd(n):
    return f"s[{n}:{n + 3}]"


def vr(b, n=4):
    return f"v[{b}:{b + n - 1}]"


def ar(b, n=4):
    return f"a[{b}:{b + n - 1}]"


def sp(n):
    return f"s[{n}:{n + 1}]"


class Gen:
    def __init__(self, diag=False, cfg=None):
        self.a = Asm()
        self.diag = diag
        self.cfg = dict(pre_flag=4, spin=1 << 16, xmod='', wmod='', bmod='')
        self.cfg.update(cfg or {})
        self.nlab = 0
        self.tsn = dict(ffn=[], att=[])
        self.role = 'ffn'
        self.ts_pend = None

    def lab(self, p):
        self.nlab += 1
        return f"L_{p}_{self.nlab}"

    def ts(self, name):
        if not self.diag:
            return
        self.ts_flush()
        self.tsn[self.role].append(name)
        self.ts_pend = len(self.tsn[self.role]) - 1
        assert self.ts_pend < 60
        self.a(f"s_memtime {sp(sTS)}")

    def ts_flush(self):
        if self.ts_pend is not None:
            self.a(f"v_writelane_b32 v{vTS}, s{sTS}, {self.ts_pend}")
            self.ts_pend = None

    def prologue(self):
        a = self.a
        a("s_cmp_ge_u32 s2, 256")
        a("s_cbranch_scc1 L_exit")
        if self.diag:
            a(f"s_memrealtime {sp(sTS + 2)}")
            a(f"s_memtime {sp(sTS + 4)}")
        a(f"s_load_dwordx2 {sp(SX)}, s[0:1], 0")
        if self.cfg.get("cpf"):
            self.code_prefetch()
        a(f"s_bitcmp1_b32 s2, 3")
        a(f"s_cbranch_scc1 L_att")

    def code_prefetch(self):
        a = self.a
        a(f"s_getpc_b64 {sp(sT0)}")
        a.label("L_pc")
        a(f"v_lshlrev_b32 v4, 7, v0")
        a(f"v_min_u32 v4, L_exit-L_pc, v4")
        a(f"v_mov_b32 v5, s{sT1}")
        a(f"v_add_co_u32 v4, vcc, s{sT0}, v4")
        a(f"v_addc_co_u32 v5, vcc, 0, v5, vcc")
        a(f"global_load_dword v254, v[4:5], off", "S0")

    def ids(self, role):
        a = self.a
        a(f"s_load_dwordx2 {sp(SW)}, s[0:1], {32 if role == 'ffn' else 8}")
        a(f"s_load_dwordx2 {sp(SWS)}, s[0:1], 72")
        a(f"s_load_dwordx2 {sp(SW2)}, s[0:1], 40")
        a(f"s_load_dwordx2 {sp(SWO)}, s[0:1], 16")
        a(f"s_load_dwordx2 {sp(SOUT)}, s[0:1], 56")
        a(f"s_load_dwordx2 {sp(SDBG)}, s[0:1], 64")
        if role == "att":
            a(f"s_load_dwordx2 {sp(SG)}, s[0:1], 48")
        a(f"v_lshrrev_b32 v4, 6, v0")
        a(f"v_and_b32 v{vL}, 63, v0")
        a(f"v_readfirstlane_b32 s{sW}, v4")
        a(f"s_and_b32 s{sT0}, s2, 1")
        a(f"s_lshl_b32 s{sT0}, s{sT0}, 3")
        a(f"s_lshr_b32 s{sRB}, s2, 5")
        a(f"s_add_u32 s{sRB}, s{sRB}, s{sT0}")
        a(f"s_and_b32 s{sT0}, s2, 6")
        a(f"s_bfe_u32 s{sCOL}, s2, 0x10004")
        a(f"s_add_u32 s{sCOL}, s{sCOL}, s{sT0}")
        a(f"s_lshr_b32 s{sRH}, s{sW}, 1")
        a(f"s_and_b32 s{sCH}, s{sW}, 1")
        a(f"v_lshrrev_b32 v4, 3, v{vL}")
        a(f"v_lshrrev_b32 v5, 4, v{vL}")
        a(f"v_and_b32 v6, 7, v{vL}")
        a(f"v_xor_b32 v7, v5, v6")
        a(f"v_lshlrev_b32 v7, 4, v7")
        a(f"v_lshl_add_u32 v{vDX}, v4, 10, v7")
        a(f"v_xor_b32 v{vDX + 1}, 64, v{vDX}")
        a(f"v_add_u32 v{vDX + 1}, 7168, v{vDX + 1}")
        a(f"v_add_u32 v{vDX + 2}, 14336, v{vDX}")
        a(f"v_add_u32 v{vDX + 3}, 14336, v{vDX + 1}")
        a(f"s_lshl_b32 s{sOX}, s{sRB}, 17")
        a(f"s_lshl_b32 s{sT0}, s{sW}, 15")
        a(f"s_add_u32 s{sOX}, s{sOX}, s{sT0}")
        a(f"s_lshl_b32 s{sMX}, s{sW}, 12")
        a(f"s_add_u32 s{sMX}, s{sMX}, {STAGE[0]}")
        for s, n in ((SX, 2048 * 1024), (SW, 512 * 3584 if role == "ffn" else 512 * 3072)):
            a(f"s_mov_b32 s{s + 2}, {n}")
            a(f"s_mov_b32 s{s + 3}, 0x20000")
        a(f"v_lshlrev_b32 v{vL16}, 4, v{vL}")
        a(f"v_lshlrev_b32 v8, 2, v5")
        a(f"v_and_b32 v8, 4, v8")
        a(f"v_xor_b32 v8, v8, v6")
        a(f"v_lshlrev_b32 v8, 4, v8")

    def x_dma(self, tag):
        return [f"buffer_load_dwordx4 v{vDX + i}, {srd(SX)}, s{sOX} offen offset:{1024 * i}{self.cfg['xmod']} lds" for i in range(4)]

    def w_dma(self, role):
        n = 7 if role == "ffn" else 6
        return [f"buffer_load_dwordx4 v{vDW + m}, {srd(SW)}, s{sOW} offen offset:{1024 * (m % 4)}{self.cfg['wmod']} lds" for m in range(n)]

    def stage_items(self, role):
        xs, ws = self.x_dma(None), self.w_dma(role)
        slots = [[f"s_mov_b32 m0, s{sMX}", xs[0]], [xs[1]], [xs[2]], [xs[3], f"s_add_u32 s{sOX}, s{sOX}, 128"]]
        for m, t in enumerate(ws):
            pre = []
            if m == 0:
                pre = [f"s_mov_b32 m0, s{sMW}"]
            elif m == 4:
                pre = [f"s_add_u32 m0, s{sMW}, 4096"]
            post = []
            if m == len(ws) - 1:
                post = [f"s_add_u32 s{sOW}, s{sOW}, {64 * (3584 if role == 'ffn' else 3072)}"]
            slots.append(pre + [t] + post)
        return slots

    def setup(self, role):
        a = self.a
        pitch = 3584 if role == "ffn" else 3072
        a(f"s_mul_i32 s{sOW}, s{sW}, {16 * pitch}")
        a(f"s_mul_i32 s{sT0}, s{sCOL}, {448 if role == 'ffn' else 128}")
        a(f"s_add_u32 s{sOW}, s{sOW}, s{sT0}")
        a(f"s_mul_i32 s{sMW}, s{sW}, {7168 if role == 'ffn' else 6144}")
        a(f"s_add_u32 s{sMW}, s{sMW}, {STAGE[0] + 16384}")
        a.wait_all(vm=False)
        self.ts("karg")
        slots = self.stage_items(role)
        for sl in slots[:4]:
            for t in sl:
                a(t, "S0")
        if role == "ffn":
            a(f"s_movk_i32 s{sT0}, 3136")
            for m in range(7):
                a(f"v_add_u32 v9, {64 * m}, v{vL}")
                a(f"v_mul_u32_u24 v9, 9363, v9")
                a(f"v_lshrrev_b32 v9, 18, v9")
                a(f"v_mad_u32_u24 v{vDW + m}, v9, s{sT0}, v{vL16}")
                if m >= 4:
                    a(f"v_add_u32 v{vDW + m}, 4096, v{vDW + m}")
                for t in slots[4 + m]:
                    a(t, "S0")
        else:
            a(f"v_mul_u32_u24 v9, 3072, v4")
            a(f"v_add_u32 v9, v9, v8")
            for m in range(6):
                off = (m & 1) * 8 * 3072 + (1024, 2048, 0)[m >> 1] - 1024 * (m % 4)
                a(f"v_add_u32 v{vDW + m}, {off}, v9")
                for t in slots[4 + m]:
                    a(t, "S0")
            a(f"s_mov_b32 s{SG + 2}, 1024")
            a(f"s_mov_b32 s{SG + 3}, 0x20000")
            a(f"s_mov_b32 m0, {L_T0}")
            a(f"buffer_load_dwordx4 v{vL16}, {srd(SG)}, 0 offen lds", "S0")
        a(f"s_add_u32 s{sMX}, s{sMX}, {DELTA[0]}")
        a(f"s_add_u32 s{sMW}, s{sMW}, {DELTA[0]}")
        for sl in slots:
            for t in sl:
                a(t, "S")
        if self.cfg.get("pf1"):
            self.prefetch1(role)
        if self.cfg.get("tlb"):
            self.touch(role)
        a(f"s_sub_u32 s{sMX}, s{sMX}, {-DELTA[1]}")
        a(f"s_sub_u32 s{sMW}, s{sMW}, {-DELTA[1]}")
        for s, n in ((SWS, WS_BYTES), (SW2, 1792 * 1024), (SWO, 512 * 1024), (SOUT, 2048 * 1024), (SDBG, 256)):
            a(f"s_mov_b32 s{s + 2}, {n}")
            a(f"s_mov_b32 s{s + 3}, 0x20000")
        a(f"v_mov_b32 v{vZ}, 0")
        if role == "ffn":
            skip = self.lab("noepoch")
            a(f"s_or_b32 s{sT0}, s2, s{sW}")
            a(f"s_cmp_lg_u32 s{sT0}, 0")
            a.raw(f"s_cbranch_scc1 {skip}")
            a.raw(f"s_load_dword s{sT0}, {sp(SWS)}, {WS_EPOCH}")
            a.raw("s_waitcnt lgkmcnt(0)")
            a.raw(f"s_add_u32 s{sT0}, s{sT0}, 1")
            a.raw(f"s_max_u32 s{sT0}, s{sT0}, 1")
            a.raw(f"v_mov_b32 v9, s{sT0}")
            a.raw("s_mov_b64 exec, 1")
            a.raw(f"buffer_store_dword v9, v{vZ}, {srd(SDBG)}, 0 offen sc1")
            a.raw(f"buffer_store_dword v9, v{vZ}, {srd(SWS)}, 0 offen sc1")
            a.raw("s_mov_b64 exec, -1")
            a.label(skip)
        a(f"s_and_b32 s{sRT}, s2, 7")
        a(f"s_lshl_b32 s{sRT}, s{sRT}, 2")
        a(f"s_lshr_b32 s{sT0}, s2, 6")
        a(f"s_add_u32 s{sRT}, s{sRT}, s{sT0}")
        a(f"s_bfe_u32 s{sCC}, s2, 0x30003")
        if self.cfg.get("ccx"):
            a(f"s_xor_b32 s{sCC}, s{sCC}, {self.cfg['ccx']}")
        a(f"s_mov_b32 s{sDA}, {DELTA[0]}")
        a(f"s_mov_b32 s{sDB}, {DELTA[1]}")
        a(f"s_mov_b32 s{sDC}, {DELTA[2]}")
        for c, val in ((cNL2E, 0xBFB8AA3B), (cONE, 0x3F800000), (cEPS, 0x358637BD), (cL2E, 0x3FB8AA3B),
                       (cM16, 0xFFFF0000)):
            a(f"s_mov_b32 s{c}, {val:#x}")
            a(f"s_mov_b32 s{c + 1}, {val:#x}")
        a(f"s_mov_b32 s{sSPIN}, {self.cfg['spin']}")
        a(f"v_lshl_add_u32 v{vDB}, v4, 10, v8")
        a(f"v_add_u32 v{vDB + 1}, 7168, v{vDB}")
        a(f"s_mul_i32 s{sOB}, s{sW}, {448 * 1024}")
        a(f"s_lshl_b32 s{sT0}, s{sCC}, 7")
        a(f"s_add_u32 s{sOB}, s{sOB}, s{sT0}")
        a(f"s_lshl_b32 s{sBA}, s{sW}, 14")
        a(f"s_mul_i32 s{sBB}, s{sW}, {10 * K}")
        a(f"s_add_u32 s{sBB}, s{sBB}, {REGB}")
        a(f"v_and_b32 v10, 31, v{vL}")
        a(f"v_lshrrev_b32 v11, 5, v{vL}")
        a(f"v_bfe_u32 v12, v{vL}, 1, 3")
        a(f"v_xor_b32 v12, v12, v11")
        a(f"v_lshlrev_b32 v12, 4, v12")
        a(f"v_lshl_add_u32 v12, v10, 7, v12")
        a(f"s_lshl_b32 s{sT0}, s{sW}, 12")
        a(f"s_add_u32 s{sT0}, s{sT0}, {STAGE[0]}")
        a(f"s_xor_b32 s{sT1}, s{sW}, 1")
        a(f"s_lshl_b32 s{sT1}, s{sT1}, 12")
        a(f"s_add_u32 s{sT1}, s{sT1}, {STAGE[0]}")
        for t in range(4):
            a(f"v_xor_b32 v13, {32 * t}, v12")
            a(f"v_add_u32 v{vXA + t}, s{sT0}, v13")
            a(f"v_add_u32 v{vXB + t}, s{sT1}, v13")
        a(f"v_bfe_u32 v13, v{vL}, 2, 2")
        a(f"v_bfe_u32 v14, v{vL}, 4, 1")
        a(f"v_lshlrev_b32 v14, 5, v14")
        a(f"v_and_b32 v15, 3, v{vL}")
        a(f"v_lshl_add_u32 v14, v15, 3, v14")
        a(f"v_lshl_add_u32 v15, v11, 3, v13")
        if role == "ffn":
            a(f"v_mul_u32_u24 v15, 448, v15")
            a(f"v_add_u32 v15, v15, v14")
            a(f"v_add_u32 v{vW3}, {STAGE[0] + 16384 + 192}, v15")
            a(f"s_lshl_b32 s{sT0}, s{sCH}, 8")
            a(f"s_add_u32 s{sT0}, s{sT0}, {STAGE[0] + 16384}")
            a(f"v_add_u32 v{vW}, s{sT0}, v15")
        else:
            a(f"v_lshl_add_u32 v15, v15, 7, v14")
            a(f"v_lshrrev_b32 v9, 1, v13")
            a(f"v_xor_b32 v9, s{sCH}, v9")
            a(f"v_lshl_add_u32 v15, v9, 6, v15")
            a(f"v_add_u32 v{vW}, {STAGE[0] + 16384}, v15")
            a(f"v_lshrrev_b32 v9, 2, v{vL}")
            a(f"v_xor_b32 v9, v9, v5")
            a(f"v_and_b32 v9, 1, v9")
            a(f"v_lshlrev_b32 v9, 10, v9")
            a(f"v_lshl_add_u32 v9, v11, 4, v9")
            a(f"v_add_u32 v{vW3}, {L_T0}, v9")
            for r in range(TMP, TMP + 4):
                a(f"v_mov_b32 v{r}, 0")
            a(f"v_add_u32 v9, {L_T0 + 1024}, v{vL16}")
            a(f"ds_write_b128 v9, {vr(TMP)}", "zero")
        a(f"v_lshl_add_u32 v15, v11, 2, v13")
        a(f"v_lshl_add_u32 v15, v15, 7, v14")
        a(f"v_lshrrev_b32 v9, 1, v13")
        a(f"v_lshl_add_u32 v15, v9, 6, v15")
        a(f"v_add_u32 v{vTA}, s{sBA}, v15")
        a(f"v_add_u32 v{vTB}, s{sBB}, v15")
        a(f"v_xor_b32 v15, 64, v15")
        a(f"v_add_u32 v{vTA + 1}, s{sBA}, v15")
        a(f"v_add_u32 v{vTB + 1}, s{sBB}, v15")
        nacc = 112 if role == "ffn" else 100
        for r in range(ACC, ACC + nacc):
            a(f"v_mov_b32 v{r}, 0")
        a(f"s_mov_b32 s{sCNT}, 6")

    def touch(self, role):
        a = self.a
        sh = self.cfg["tlb"]
        for s_, n in ((SW2, 1792 * 1024), (SWO, 512 * 1024), (SOUT, 2048 * 1024), (SWS, WS_BYTES)):
            a(f"s_mov_b32 s{s_ + 2}, {n}")
            a(f"s_mov_b32 s{s_ + 3}, 0x20000")
        a(f"s_lshr_b32 s{sT0}, s2, 4")
        a(f"s_lshl_b32 s{sT0}, s{sT0}, 2")
        a(f"s_add_u32 s{sT0}, s{sT0}, s{sW}")
        a(f"s_lshl_b32 s{sT0}, s{sT0}, {sh + 3}")
        a(f"v_lshlrev_b32 v9, {sh}, v6")
        a("s_mov_b64 exec, 0xff")
        for i, r in enumerate((SW, SW2, SWO)):
            a(f"buffer_load_dword v{248 + i}, v9, {srd(r)}, s{sT0} offen", "PF")
        if self.cfg.get("tlbws"):
            a(f"buffer_load_dword v251, v9, {srd(SOUT)}, s{sT0} offen", "PF")
            for q in range(5):
                a(f"s_add_u32 s{sT0}, s{sT0}, {WS_A}")
                a(f"buffer_load_dword v{240 + q}, v9, {srd(SWS)}, s{sT0} offen", "PF")
        a("s_mov_b64 exec, -1")

    def prefetch1(self, role):
        a = self.a
        r = 1 if role == "att" else 0
        pitch, nl = (3584, 7) if role == "ffn" else (3072, 6)
        a(f"s_and_b32 s{sT0}, s{sCOL}, 1")
        a(f"s_lshl_b32 s{sT0}, s{sT0}, 3")
        a(f"s_add_u32 s{sT0}, s{sT0}, s{sW}")
        a(f"s_add_u32 s{sT0}, s{sT0}, {4 * r}")
        a(f"s_lshl_b32 s{sT0}, s{sT0}, 13")
        a(f"s_lshl_b32 s{sT1}, s{sRB}, 17")
        a(f"s_add_u32 s{sT0}, s{sT0}, s{sT1}")
        a(f"v_lshlrev_b32 v9, 7, v{vL}")
        a(f"buffer_load_dword v248, v9, {srd(SX)}, s{sT0} offen {self.cfg.get('pfmod', '')}", "PF")
        a(f"s_and_b32 s{sT0}, s{sRB}, 7")
        a(f"s_lshl_b32 s{sT0}, s{sT0}, 1")
        a(f"s_and_b32 s{sT1}, s{sCOL}, 1")
        a(f"s_add_u32 s{sT0}, s{sT0}, s{sT1}")
        a(f"s_lshl_b32 s{sT0}, s{sT0}, 2")
        a(f"s_add_u32 s{sT0}, s{sT0}, s{sW}")
        a(f"s_mul_i32 s{sT0}, s{sT0}, {pitch}")
        a(f"s_lshr_b32 s{sT1}, s{sCOL}, 1")
        a(f"s_mul_i32 s{sT1}, s{sT1}, {896 if role == 'ffn' else 256}")
        a(f"s_add_u32 s{sT0}, s{sT0}, s{sT1}")
        a(f"s_mov_b32 s{sT1}, {64 * pitch}")
        a(f"v_mul_lo_u32 v9, v4, s{sT1}")
        if role == "ffn":
            a(f"v_min_u32 v10, 6, v6")
            a(f"v_lshl_add_u32 v9, v10, 7, v9")
        else:
            a(f"v_min_u32 v10, 5, v6")
            a(f"v_lshrrev_b32 v11, 1, v10")
            a(f"v_and_b32 v10, 1, v10")
            a(f"v_lshl_add_u32 v9, v11, 10, v9")
            a(f"v_lshl_add_u32 v9, v10, 7, v9")
        a(f"buffer_load_dword v249, v9, {srd(SW)}, s{sT0} offen {self.cfg.get('pfmod', '')}", "PF")

    def reads(self, role, t):
        p = t & 1
        w = WF + 16 * p
        if role == "ffn":
            tr = lambda i, j: (f"ds_read_b64_tr_b16 {vr(w + 4 * i + 2 * j, 2)}, v{vW if i < 3 else vW3} "
                               f"offset:{t * 7168 + j * 1792 + (64 * i if i < 3 else 0)}")
            last = [tr(3, 0), tr(3, 1)]
        else:
            tr = lambda i, j: (f"ds_read_b64_tr_b16 {vr(w + 4 * i + 2 * j, 2)}, v{vW} "
                               f"offset:{t * 6144 + i * 2048 + j * 512}")
            last = [f"ds_read_b128 {vr(w + 12)}, v{vW3} offset:{32 * t}"]
        return [[(f"ds_read_b128 {vr(XA + 4 * p)}, v{vXA + t}", "r0"), (tr(0, 0), "r0")],
                [(tr(0, 1), "r0"), (f"ds_read_b128 {vr(XB + 4 * p)}, v{vXB + t}", "r0")],
                [(tr(1, 0), "r0"), (tr(1, 1), "r0")],
                [(tr(2, 0), "r1"), (tr(2, 1), "r1")],
                [(x, "r1") for x in last]]

    def mfmas(self, role, t):
        p = t & 1
        w = WF + 16 * p
        xa, xb = vr(XA + 4 * p), vr(XB + 4 * p)
        out = []
        for k in range(6):
            d = vr(ACC + 16 * k, 16)
            x = xb if k & 1 else xa
            wf = vr(w + 4 * (k >> 1))
            if role == "att" and k < 4:
                out.append(f"v_mfma_f32_32x32x16_bf16 {d}, {x}, {wf}, {d}")
            else:
                out.append(f"v_mfma_f32_32x32x16_bf16 {d}, {wf}, {x}, {d}")
        if role == "ffn":
            d = vr(ACC + 96, 16)
            out.append(f"v_mfma_f32_32x32x16_bf16 {d}, {vr(w + 12)}, {xa}, {d}")
        else:
            d = vr(ACC + 96, 4)
            out.append(f"v_mfma_f32_16x16x32_bf16 {d}, {vr(w + 12)}, {xa}, {d}")
        return out

    def retag(self, q, old, new):
        return [(new if t == old else t, d, s) for t, d, s in q]

    def part_q(self, role, slots, tag, rotate):
        a = self.a
        slots = list(slots)
        pos = [(0, 1), (0, 3), (0, 5), (0, 6), (1, 1), (1, 3), (1, 5), (1, 6), (2, 1), (2, 3), (2, 5), (2, 6)]
        place = dict(zip(pos, slots))
        assert len(slots) <= len(pos)
        upd = {}
        if rotate:
            add = lambda r: f"v_add_u32 v{r}, s{sDA}, v{r}"
            upd[(0, 0)] = [add(vXA)]
            upd[(0, 2)] = [add(vXB)]
            upd[(0, 4)] = [add(vXA + 1), add(vXB + 1)]
            upd[(1, 4)] = [add(vXA + 2), add(vXB + 2)]
            upd[(2, 4)] = [add(vXA + 3), add(vXB + 3)]
            upd[(2, 5)] = [add(vW)]
            upd[(2, 6)] = [add(vW3) if role == "ffn" else f"v_add_u32 v{vW3}, 128, v{vW3}"]
        for t in range(3):
            rd = self.reads(role, t + 1)
            a.lg = self.retag(self.retag(a.lg, "r0", "o0"), "r1", "o1")
            for g, m in enumerate(self.mfmas(role, t)):
                if g == 0:
                    a.wait_lg("o0")
                if g == 4:
                    a.wait_lg("o1")
                a(m)
                sl = place.get((t, g), [])
                pre = [x for x in sl if x.startswith("s_") and "m0" in x]
                for x in pre:
                    a(x)
                if g < 5:
                    for x, tg in rd[g]:
                        a(x, tg)
                for x in sl:
                    if x not in pre:
                        if isinstance(tag, dict):
                            a(x, tag[id(sl)])
                        else:
                            a(x, tag)
                for x in upd.get((t, g), []):
                    a(x)

    def part_p(self, role, wait_tags, nxt, tail=()):
        a = self.a
        rd = self.reads(role, 0) if nxt else [[]] * 5
        tail = list(tail)
        a.wait_all(vm=False)
        for g, m in enumerate(self.mfmas(role, 3)):
            a(m)
            if g == 1:
                a.wait_vm(*wait_tags)
                a("s_barrier")
            if 1 <= g <= 5:
                for x, tg in rd[g - 1]:
                    a(x, tg)
            if g >= 2 and tail:
                for x in tail.pop(0):
                    a(x)
        assert not tail

    def b_slot(self, b):
        s = b % NB_REG
        if s < 8:
            return f"s{sBA}", 2048 * s
        if s < 13:
            return f"s{sBB}", 2048 * (s - 8)
        return f"s{sBB}", REGC - REGB + 2048 * (s - 13)

    def b_dma(self, b):
        base, off = self.b_slot(b)
        rs = srd(SW2 if b < 28 else SWO)
        pre = []
        if b == 28:
            pre = [f"s_lshl_b32 s{sOB}, s{sW}, 17", f"s_lshl_b32 s{sT3}, s{sCC}, 7", f"s_add_u32 s{sOB}, s{sOB}, s{sT3}"]
        return [pre + [f"s_add_u32 m0, {base}, {off}", f"buffer_load_dwordx4 v{vDB}, {rs}, s{sOB} offen{self.cfg['bmod']} lds"],
                [f"buffer_load_dwordx4 v{vDB + 1}, {rs}, s{sOB} offen offset:1024{self.cfg['bmod']} lds",
                 f"s_add_u32 s{sOB}, s{sOB}, 16384"]]

    def b_reads(self, b, dst):
        s = b % NB_REG
        if s < 8:
            base, off = vTA, 2048 * s
        elif s < 13:
            base, off = vTB, 2048 * (s - 8)
        else:
            base, off = vTB, REGC - REGB + 2048 * (s - 13)
        return [f"ds_read_b64_tr_b16 {dst(4 * ct + 2 * j)}, v{base + ct} offset:{off + 1024 * j}"
                for ct in range(2) for j in range(2)]

    def emit_b_dma(self, b):
        a = self.a
        if b >= NB_REG:
            a.wait_lg(f"M{b - NB_REG}")
        for sl in self.b_dma(b):
            for x in sl:
                a(x, f"B{b}")

    def emit_b_move(self, b):
        a = self.a
        a.wait_vm(f"B{b}")
        for x in self.b_reads(b, lambda o: ar(8 * b + o, 2)):
            a(x, f"M{b}")

    def main_loop(self, role):
        a = self.a
        self.ts("setup")
        a.wait_lg("zero")
        a.wait_vm("S0")
        a("s_barrier")
        self.ts("s0rdy")
        for grp in self.reads(role, 0):
            for x, tg in grp:
                a(x, tg)
        loop = f"L_loop_{role}"
        a.vm = [e for e in a.vm if e[0] != "PF"]
        sig0 = a.sig()
        start = len(a.out)
        a.label(loop)
        self.part_q(role, self.stage_items(role), "N", True)
        rot = [[f"s_add_u32 s{sMX}, s{sMX}, s{sDC}", f"s_add_u32 s{sMW}, s{sMW}, s{sDC}"],
               [f"s_mov_b32 s{sT0}, s{sDA}", f"s_mov_b32 s{sDA}, s{sDB}"],
               [f"s_mov_b32 s{sDB}, s{sDC}", f"s_mov_b32 s{sDC}, s{sT0}"],
               [f"s_sub_u32 s{sCNT}, s{sCNT}, 1", f"s_cmp_lg_u32 s{sCNT}, 0"]]
        self.part_p(role, ["S"], True, rot)
        a.raw(f"s_cbranch_scc1 {loop}")
        a.check_backedge(start)
        a.vm = self.retag(a.vm, "N", "S")
        if not self.diag:
            assert a.sig() == sig0, (a.sig(), sig0)
        for it in range(2):
            slots, tags = [], {}
            for b in range(6 * it, 6 * it + 6):
                for sl in self.b_dma(b):
                    slots.append(sl)
                    tags[id(sl)] = f"B{b}"
            self.ts(f"st{6 + it}")
            if it == 0:
                a(f"buffer_load_dword v{vNO}, v{vZ}, {srd(SDBG)}, 0 offen sc1", "nonce")
            self.part_q(role, slots, tags, it == 0)
            self.part_p(role, ["S"], it == 0)
        self.ts("loopend")

    def spin(self, check, reload, branch_ok, branch_retry):
        a = self.a
        done, retry = self.lab("ok"), self.lab("retry")
        for x in check:
            a(x)
        a.raw(f"{branch_ok} {done}")
        a.label(retry)
        a.raw(f"s_sub_u32 s{sSPIN}, s{sSPIN}, 1")
        a.raw(f"s_cmp_lt_i32 s{sSPIN}, 0")
        a.raw(f"s_cbranch_scc1 {done}")
        a.raw(reload)
        a.raw("s_waitcnt vmcnt(0)")
        for x in check:
            a.raw(x)
        a.raw(f"{branch_retry} {retry}")
        a.label(done)

    def get_nonce(self):
        self.spin([f"v_readfirstlane_b32 s{sNON}, v{vNO}", f"s_cmp_lg_u32 s{sNON}, 0"],
                  f"buffer_load_dword v{vNO}, v{vZ}, {srd(SDBG)}, 0 offen sc1", "s_cbranch_scc1", "s_cbranch_scc0")

    def poll_load(self, soff):
        return f"buffer_load_dword v{vFL}, v{vPA}, {srd(SWS)}, s{soff} offen sc1"

    def poll_check(self, soff):
        self.spin([f"v_cmp_ne_u32 vcc, s{sNON}, v{vFL}"], self.poll_load(soff), "s_cbranch_vccz", "s_cbranch_vccnz")

    def set_flag(self, soff):
        a = self.a
        a("s_mov_b64 exec, 1")
        a(f"buffer_store_dword v{vNO}, v{vZ}, {srd(SWS)}, s{soff} offen sc1", "flag")
        a("s_mov_b64 exec, -1")

    def ffn_epilogue(self):
        a = self.a
        a(f"s_lshl_b32 s{sT0}, s{sRB}, 2")
        a(f"s_add_u32 s{sT1}, s{sT0}, s{sW}")
        a(f"s_xor_b32 s{sT2}, s{sT1}, 1")
        a(f"s_mul_i32 s{sT1}, s{sT1}, {144 * K}")
        a(f"s_mul_i32 s{sT2}, s{sT2}, {144 * K}")
        a(f"s_mul_i32 s{sT0}, s{sCOL}, {14 * K}")
        a(f"s_add_u32 s{sT0}, s{sT0}, {WS_A}")
        a(f"s_add_u32 s{sH3}, s{sT1}, s{sT0}")
        a(f"s_lshl_b32 s{sT3}, s{sCH}, 13")
        a(f"s_add_u32 s{sHA}, s{sH3}, s{sT3}")
        a(f"s_add_u32 s{sHB}, s{sT2}, s{sT0}")
        a(f"s_add_u32 s{sHB}, s{sHB}, s{sT3}")
        a(f"s_add_u32 s{sH3}, s{sH3}, {6 * K}")
        moves = {n: [n] for n in range(8)}
        moves.update({8: [8, 9], 9: [10, 11], 10: [12, 13], 11: [14, 15], 12: [16], 13: [17]})
        for n in range(14):
            k, half = n >> 1, n & 1
            src = ACC + 16 * k + 8 * half
            t = TMP + 8 * (n & 1)
            o = TMP + 16 + 4 * (n % 3)
            if n and n % 2 == 0:
                self.ts(f"silu{n}")
            self.emit_b_dma(12 + n)
            for i in range(4):
                a(f"v_pk_mul_f32 {vr(t + 2 * i, 2)}, {vr(src + 2 * i, 2)}, {sp(cNL2E)}")
            for i in range(8):
                a(f"v_exp_f32 v{t + i}, v{t + i}")
            for i in range(4):
                a(f"v_pk_add_f32 {vr(t + 2 * i, 2)}, {vr(t + 2 * i, 2)}, {sp(cONE)}")
            for b in moves[n]:
                self.emit_b_move(b)
            for i in range(8):
                a(f"v_rcp_f32 v{t + i}, v{t + i}")
            for i in range(4):
                a(f"v_pk_mul_f32 {vr(t + 2 * i, 2)}, {vr(t + 2 * i, 2)}, {vr(src + 2 * i, 2)}")
            for i in range(4):
                a(f"v_cvt_pk_bf16_f32 v{o + i}, v{t + 2 * i}, v{t + 2 * i + 1}")
            if n == 8:
                a(f"s_add_u32 s{sHA}, s{sHA}, 4096")
                a(f"s_add_u32 s{sHB}, s{sHB}, 4096")
            so = sH3 if k == 6 else (sHB if k & 1 else sHA)
            off = 1024 * half + (2048 if k in (2, 3) else 0)
            a(f"buffer_store_dwordx4 {vr(o)}, v{vL16}, {srd(SWS)}, s{so} offen offset:{off} sc1", "H")
        self.ts("pub")
        self.get_nonce()
        nb = 26
        for _ in range(self.cfg["pre_flag"]):
            self.emit_b_dma(nb)
            nb += 1
        a(f"s_lshl_b32 s{sT0}, s{sRB}, 1")
        a(f"s_add_u32 s{sT0}, s{sT0}, s{sRH}")
        a(f"s_lshl_b32 s{sT0}, s{sT0}, 3")
        a(f"s_add_u32 s{sT0}, s{sT0}, s{sCOL}")
        a(f"s_lshl_b32 s{sT0}, s{sT0}, 1")
        a(f"s_add_u32 s{sT0}, s{sT0}, s{sCH}")
        a(f"s_lshl_b32 s{sT0}, s{sT0}, 7")
        a(f"s_add_u32 s{sT0}, s{sT0}, {WS_HF}")
        a.wait_vm("H")
        self.set_flag(sT0)
        self.ts("flag")
        return nb

    def phi(self, src, dst, n, bg):
        a = self.a
        t = TMP + 16 * (n & 1)
        u = t + 8
        for i in range(4):
            a(f"v_pk_mul_f32 {vr(t + 2 * i, 2)}, {vr(src + 2 * i, 2)}, {sp(cL2E)}")
        for i in range(4):
            a(f"v_pk_add_f32 {vr(u + 2 * i, 2)}, {vr(src + 2 * i, 2)}, {sp(cEPS)}")
        for i in range(8):
            a(f"v_exp_f32 v{t + i}, v{t + i} clamp")
        for f in bg:
            f()
        for i in range(8):
            a(f"v_max_f32 v{u + i}, s{cEPS}, v{u + i}")
        for i in range(4):
            a(f"v_pk_add_f32 {vr(t + 2 * i, 2)}, {vr(t + 2 * i, 2)}, {vr(u + 2 * i, 2)}")
        for i in range(4):
            a(f"v_cvt_pk_bf16_f32 v{dst + i}, v{t + 2 * i}, v{t + 2 * i + 1}")

    def att_epilogue(self):
        a = self.a
        KA, VA, QA, LG = ACC, ACC + 32, ACC + 64, ACC + 96
        PK, PV, ONES, KV, ZZ, MM = 128, 144, 160, 16, 32, 48
        G, GB, GO = 164, 165, 166
        a0, a1, a2, a3, a4, a5, a6, a7 = range(vM, vM + 8)
        dma = lambda b: (lambda: self.emit_b_dma(b))
        mov = lambda b: (lambda: self.emit_b_move(b))
        for n in range(4):
            bg = [dma(12 + n), mov(n)]
            self.phi(KA + 8 * n, PK + 4 * n, n, bg)
        for i in range(16):
            a(f"v_cvt_pk_bf16_f32 v{PV + i}, v{VA + 2 * i}, v{VA + 2 * i + 1}")
        for i in range(4):
            a(f"v_mov_b32 v{ONES + i}, 0x3f803f80")
        a(f"v_and_b32 v10, 31, v{vL}")
        a(f"v_lshrrev_b32 v11, 5, v{vL}")
        a(f"v_and_b32 v12, 15, v{vL}")
        fill = [
            f"v_mul_f32 v{G}, s{cNL2E}, v{LG}",
            f"v_lshlrev_b32 v13, 8, v11",
            f"v_exp_f32 v{G}, v{G}",
            f"v_lshl_add_u32 v13, v12, 4, v13",
            f"s_lshl_b32 s{sT0}, s{sW}, 11",
            f"v_add_f32 v{G}, 1.0, v{G}",
            f"s_add_u32 s{sT0}, s{sT0}, {L_SCR}",
            f"v_rcp_f32 v{G}, v{G}",
            f"v_add_u32 v13, s{sT0}, v13",
            f"s_lshl_b32 s{sT0}, s{sW}, 6",
            f"s_add_u32 s{sT0}, s{sT0}, {L_T1}",
            f"v_lshl_add_u32 v14, v11, 4, s{sT0}",
            f"v_cndmask_b32 v{a0}, v13, v14, {sp(cM16)}",
            f"v_add_u32 v13, 1024, v13",
            f"v_add_u32 v14, 32, v14",
            f"v_cndmask_b32 v{a1}, v14, v13, {sp(cM16)}",
            f"s_lshl_b32 s{sT0}, s{sW}, 7",
            f"s_add_u32 s{sT0}, s{sT0}, {L_T1 + 1024}",
            f"v_lshl_add_u32 v{a2}, v10, 2, s{sT0}",
            f"ds_write_b32 v{a2}, v{G}",
            f"v_xor_b32 v{a2}, 128, v{a2}",
        ]
        for n in range(4):
            c = "0" if n == 0 else None
            a(f"v_mfma_f32_32x32x16_bf16 {vr(KV, 16)}, {vr(PK + 4 * n)}, {vr(PV + 4 * n)}, {c or vr(KV, 16)}")
            for x in fill[:3]:
                a(x)
            fill = fill[3:]
            a(f"v_mfma_f32_32x32x16_bf16 {vr(ZZ, 16)}, {vr(PK + 4 * n)}, {vr(ONES)}, {c or vr(ZZ, 16)}")
            for x in fill[:3]:
                a(x)
            fill = fill[3:]
        assert not fill
        a(f"s_lshl_b32 s{sT1}, s{sCH}, 1")
        a(f"s_add_u32 s{sT1}, s{sT1}, s{sRH}")
        a(f"s_lshl_b32 s{sT0}, s{sT1}, 10")
        a(f"s_add_u32 s{sT0}, s{sT0}, {L_SCR}")
        a(f"v_add_u32 v{a3}, s{sT0}, v{vL16}")
        a(f"s_lshl_b32 s{sT0}, s{sT1}, 5")
        a(f"s_add_u32 s{sT0}, s{sT0}, {L_T1}")
        a(f"v_bfe_u32 v13, v{vL}, 3, 1")
        a(f"v_lshlrev_b32 v13, 9, v13")
        a(f"v_and_b32 v14, 7, v{vL}")
        a(f"v_lshl_add_u32 v13, v14, 2, v13")
        a(f"v_add_u32 v{a4}, s{sT0}, v13")
        for r in range(8):
            a(f"v_cndmask_b32 v{MM + r}, v{KV + r}, v{ZZ + r}, {sp(cM16)}")
        for r in range(8):
            a(f"v_cndmask_b32 v{MM + 8 + r}, v{ZZ + 8 + r}, v{KV + 8 + r}, {sp(cM16)}")
        for h in range(2):
            for q in range(2):
                a(f"ds_write_b128 v{a0 + h}, {vr(MM + 8 * h + 4 * q)} offset:{512 * q}")
        a(f"s_lshl_b32 s{sT2}, s{sCOL}, 2")
        a(f"s_add_u32 s{sT2}, s{sT2}, s{sT1}")
        a(f"s_lshl_b32 s{sT2}, s{sT2}, 4")
        a(f"s_mul_i32 s{sA0}, s{sT2}, 1152")
        a(f"s_add_u32 s{sA0}, s{sA0}, {WS_KV}")
        a(f"s_lshl_b32 s{sA1}, s{sT2}, 7")
        a(f"s_add_u32 s{sA1}, s{sA1}, {WS_KVF}")
        a(f"s_mul_i32 s{sT0}, s{sRB}, 1152")
        a(f"s_add_u32 s{sT0}, s{sT0}, s{sA0}")
        a(f"v_lshlrev_b32 v{a5}, 2, v12")
        a(f"v_add_u32 v{a5}, 1024, v{a5}")
        a(f"s_lshl_b32 s{sT3}, s{sRH}, 8")
        a(f"s_add_u32 s{sT3}, s{sT3}, {L_T1 + 1024}")
        a(f"v_lshl_add_u32 v13, v{vL}, 2, s{sT3}")
        a.wait_all(vm=False)
        a("s_barrier")
        a(f"ds_read_b128 {vr(64)}, v{a3}")
        a(f"ds_read_b128 {vr(68)}, v{a3} offset:4096")
        a(f"ds_read_b32 v72, v{a4}")
        a(f"ds_read_b32 v73, v{a4} offset:128")
        a(f"ds_read_b32 v{GB}, v{a2}")
        a(f"ds_read_b32 v{GO}, v13")
        self.get_nonce()
        a(f"v_pk_add_f32 {vr(64, 2)}, {vr(64, 2)}, {vr(68, 2)}")
        a(f"v_pk_add_f32 {vr(66, 2)}, {vr(66, 2)}, {vr(70, 2)}")
        a(f"v_add_f32 v72, v72, v73")
        a(f"buffer_store_dwordx4 {vr(64)}, v{vL16}, {srd(SWS)}, s{sT0} offen sc1", "KV")
        a("s_mov_b64 exec, 0xffff")
        a(f"buffer_store_dword v72, v{a5}, {srd(SWS)}, s{sT0} offen sc1", "KV")
        a("s_mov_b64 exec, -1")
        self.ts("pub")
        PQ = 128
        self.phi(QA, PQ, 0, [dma(16), mov(4)])
        self.phi(QA + 8, PQ + 4, 1, [dma(17), mov(5)])
        a(f"s_lshl_b32 s{sT0}, s{sRB}, 7")
        a(f"s_add_u32 s{sT0}, s{sT0}, s{sA1}")
        a.wait_vm("KV")
        self.set_flag(sT0)
        self.ts("flag")
        a(f"v_lshlrev_b32 v{vPA}, 7, v12")
        self.phi(QA + 16, PQ + 8, 2, [dma(18), mov(6), mov(7)])
        self.phi(QA + 24, PQ + 12, 3, [dma(19), mov(8), mov(9)])
        a(self.poll_load(sA1), "poll")
        a(f"s_mul_i32 s{sT0}, s{sT1}, 576")
        a(f"s_add_u32 s{sT0}, s{sT0}, {L_T1 + 1536}")
        a(f"v_lshlrev_b32 v13, 4, v10")
        a(f"v_lshl_add_u32 v13, v11, 3, v13")
        a(f"v_add_u32 v{a0}, s{sT0}, v13")
        a(f"v_bfe_u32 v13, v{vL}, 2, 1")
        a(f"v_lshlrev_b32 v13, 4, v13")
        a(f"v_bfe_u32 v14, v{vL}, 3, 1")
        a(f"v_lshl_add_u32 v13, v14, 3, v13")
        a(f"v_and_b32 v14, 3, v{vL}")
        a(f"v_lshl_add_u32 v13, v14, 1, v13")
        a(f"s_add_u32 s{sT0}, s{sT0}, 512")
        a(f"v_add_u32 v{a1}, s{sT0}, v13")
        a(f"s_mul_i32 s{sT0}, s{sCH}, 1152")
        a(f"s_add_u32 s{sT0}, s{sT0}, {L_T1 + 1536}")
        a(f"v_lshlrev_b32 v13, 8, v11")
        a(f"v_lshl_add_u32 v13, v12, 4, v13")
        a(f"v_lshlrev_b32 v14, 4, v11")
        a(f"v_add_u32 v14, 512, v14")
        a(f"v_cndmask_b32 v13, v13, v14, {sp(cM16)}")
        a(f"v_add_u32 v{a3}, s{sT0}, v13")
        a(f"v_sub_f32 v{GO}, 1.0, v{GO}")
        for b in (10, 11):
            self.emit_b_move(b)
        self.poll_check(sA1)
        self.ts("kvpoll")
        P0, Z0 = 16, 96
        for p in range(16):
            a(f"buffer_load_dwordx4 {vr(P0 + 4 * p)}, v{vL16}, {srd(SWS)}, s{sA0} offen offset:{1152 * (p % 4)} sc1")
            a("s_mov_b64 exec, 0xffff")
            a(f"buffer_load_dword v{Z0 + p}, v{a5}, {srd(SWS)}, s{sA0} offen offset:{1152 * (p % 4)} sc1")
            a("s_mov_b64 exec, -1")
            if p % 4 == 3:
                a(f"s_add_u32 s{sA0}, s{sA0}, 4608")
        for b in (20, 21, 22, 23):
            self.emit_b_dma(b)
        self.ts("kvld")
        for p in range(1, 16):
            a(f"v_pk_add_f32 {vr(P0, 2)}, {vr(P0, 2)}, {vr(P0 + 4 * p, 2)}")
            a(f"v_pk_add_f32 {vr(P0 + 2, 2)}, {vr(P0 + 2, 2)}, {vr(P0 + 4 * p + 2, 2)}")
            a(f"v_add_f32 v{Z0}, v{Z0}, v{Z0 + p}")
        a(f"v_cvt_pk_bf16_f32 v{P0}, v{P0}, v{P0 + 1}")
        a(f"v_cvt_pk_bf16_f32 v{P0 + 1}, v{P0 + 2}, v{P0 + 3}")
        a(f"v_cvt_pk_bf16_f32 v{Z0}, v{Z0}, v{Z0}")
        self.ts("kvsum")
        a(f"ds_write_b64 v{a0}, {vr(P0, 2)}")
        a("s_mov_b64 exec, 0xffff")
        a(f"ds_write_b16 v{a1}, v{Z0}")
        a("s_mov_b64 exec, -1")
        a(f"s_lshl_b32 s{sT0}, s{sRB}, 2")
        a(f"s_add_u32 s{sT1}, s{sT0}, s{sW}")
        a(f"s_xor_b32 s{sT2}, s{sT1}, 1")
        a(f"s_mul_i32 s{sHA}, s{sT1}, {144 * K}")
        a(f"s_mul_i32 s{sHB}, s{sT2}, {144 * K}")
        a(f"s_lshl_b32 s{sT0}, s{sCOL}, 1")
        a(f"s_add_u32 s{sT0}, s{sT0}, s{sCH}")
        a(f"s_lshl_b32 s{sT1}, s{sT0}, 11")
        a(f"s_add_u32 s{sT1}, s{sT1}, {WS_A + 112 * K}")
        a(f"s_add_u32 s{sHA}, s{sHA}, s{sT1}")
        a(f"s_add_u32 s{sHB}, s{sHB}, s{sT1}")
        a(f"s_lshl_b32 s{sT0}, s{sT0}, 13")
        a(f"s_lshl_b32 s{sT1}, s{sRB}, 9")
        a(f"s_add_u32 s{sT0}, s{sT0}, s{sT1}")
        a(f"s_lshl_b32 s{sT1}, s{sRH}, 8")
        a(f"s_add_u32 s{sT0}, s{sT0}, s{sT1}")
        a(f"s_add_u32 s{sH3}, s{sT0}, {WS_OMG}")
        a(f"v_lshlrev_b32 v{a4}, 2, v{vL}")
        a.wait_all(vm=False)
        a("s_barrier")
        F = 144
        a(f"ds_read_b128 {vr(F)}, v{a3}")
        a(f"ds_read_b128 {vr(F + 4)}, v{a3} offset:576")
        a(f"buffer_store_dword v{GO}, v{a4}, {srd(SWS)}, s{sH3} offen sc1", "O")
        for n in range(4):
            rf, h = n >> 1, n & 1
            a(f"v_mfma_f32_32x32x16_bf16 {vr(16 + 16 * n, 16)}, {vr(F + 4 * h)}, {vr(PQ + 8 * rf + 4 * h)}, 0")
        for n in range(4):
            rf, h = n >> 1, n & 1
            d = 16 + 16 * n
            o = TMP + 4 * n
            a(f"v_add_f32 v{d + 8}, s{cEPS}, v{d + 8}")
            a(f"v_rcp_f32 v{d + 8}, v{d + 8}")
            a(f"v_mul_f32 v{d + 8}, v{d + 8}, v{GB if rf else G}")
            for i in range(8):
                a(f"v_mul_f32 v{d + i}, v{d + i}, v{d + 8}")
            for i in range(4):
                a(f"v_cvt_pk_bf16_f32 v{o + i}, v{d + 2 * i}, v{d + 2 * i + 1}")
            a(f"buffer_store_dwordx4 {vr(o)}, v{vL16}, {srd(SWS)}, s{sHB if rf else sHA} offen offset:{1024 * h} sc1", "O")
        self.ts("ostored")
        for b in range(12, 18):
            self.emit_b_move(b)
        for b in range(24, 28):
            self.emit_b_dma(b)
        a(f"s_lshl_b32 s{sT0}, s{sRB}, 1")
        a(f"s_add_u32 s{sT0}, s{sT0}, s{sRH}")
        a(f"s_lshl_b32 s{sT0}, s{sT0}, 3")
        a(f"s_add_u32 s{sT0}, s{sT0}, s{sCOL}")
        a(f"s_lshl_b32 s{sT0}, s{sT0}, 1")
        a(f"s_add_u32 s{sT0}, s{sT0}, s{sCH}")
        a(f"s_lshl_b32 s{sT0}, s{sT0}, 7")
        a(f"s_add_u32 s{sT0}, s{sT0}, {WS_OF}")
        self.ts("preof")
        a.wait_vm("O")
        self.set_flag(sT0)
        self.ts("oflag")
        return 28

    def a_load(self, b, rf):
        a = self.a
        s = sA0 + rf
        r = b if b < 28 else b - 28
        if b == 28:
            a(f"s_add_u32 s{s}, s{s}, s{sHA}")
        elif r % 4 == 0 and r:
            a(f"s_add_u32 s{s}, s{s}, 4096")
        dst = ar(A_RING + 8 * (b % A_DEPTH) + 4 * rf)
        a(f"buffer_load_dwordx4 {dst}, v{vL16}, {srd(SWS)}, s{s} offen offset:{1024 * (r % 4)} sc1", f"A{b}")

    def phase2(self, nb):
        a = self.a
        OM, BB = 80, 144
        a(f"v_and_b32 v{vPA}, 3, v{vL}")
        a(f"v_lshlrev_b32 v{vPA}, 7, v{vPA}")
        a(f"s_lshl_b32 s{sT0}, s{sRT}, 2")
        a(f"s_add_u32 s{sT0}, s{sT0}, s{sW}")
        a(f"s_lshl_b32 s{sT0}, s{sT0}, 9")
        a(f"s_add_u32 s{sT1}, s{sT0}, {WS_HF}")
        a(f"s_add_u32 s{sHB}, s{sT0}, {WS_OF}")
        a(self.poll_load(sT1), "poll")
        while nb < 36:
            self.emit_b_dma(nb)
            nb += 1
        a(f"s_mul_i32 s{sA0}, s{sRT}, {288 * K}")
        a(f"s_mul_i32 s{sT0}, s{sW}, {28 * K}")
        a(f"s_add_u32 s{sA0}, s{sA0}, s{sT0}")
        a(f"s_add_u32 s{sA0}, s{sA0}, {WS_A}")
        a(f"s_add_u32 s{sA1}, s{sA0}, {144 * K}")
        a(f"s_mul_i32 s{sT0}, s{sW}, {20 * K}")
        a(f"s_sub_u32 s{sHA}, {88 * K}, s{sT0}")
        a(f"s_lshl_b32 s{sT0}, s{sW}, 15")
        a(f"s_lshl_b32 s{sT2}, s{sRT}, 8")
        a(f"s_add_u32 s{sT0}, s{sT0}, s{sT2}")
        a(f"s_add_u32 s{sH3}, s{sT0}, {WS_OMG}")
        a(f"s_lshl_b32 s{sT0}, s{sW}, 8")
        a(f"s_add_u32 s{sT0}, s{sT0}, {L_T0}")
        a(f"v_lshlrev_b32 v{vM}, 2, v{vL}")
        a(f"v_add_u32 v{vM + 1}, s{sT0}, v{vM}")
        a(f"v_lshrrev_b32 v11, 5, v{vL}")
        a(f"v_lshl_add_u32 v{vM + 2}, v11, 4, s{sT0}")
        self.poll_check(sT1)
        self.ts("hpoll")
        for b in range(A_DEPTH):
            self.a_load(b, 0)
            self.a_load(b, 1)
        for b in range(36):
            if b in (0, 1, 4, 8, 12, 14, 18, 22, 26, 30):
                self.ts(f"b{b}")
            if b == 28 - A_DEPTH:
                a(self.poll_load(sHB), "poll")
                self.poll_check(sHB)
                self.ts("opoll")
                a(f"buffer_load_dword v{vM + 3}, v{vM}, {srd(SWS)}, s{sH3} offen sc1")
            if b == 26:
                a(f"ds_write_b32 v{vM + 1}, v{vM + 3}", "om")
                a.wait_lg("om")
                for rf in range(2):
                    for q in range(4):
                        a(f"ds_read_b128 {vr(OM + 16 * rf + 4 * q)}, v{vM + 2} offset:{128 * rf + 32 * q}")
            if b == 28:
                for n in range(4):
                    for i in range(8):
                        d = vr(ACC + 16 * n + 2 * i, 2)
                        a(f"v_pk_mul_f32 {d}, {d}, {vr(OM + 16 * (n >> 1) + 2 * i, 2)}")
            nxt = []
            if NB_REG <= b + 1 < 36:
                a.wait_vm(f"B{b + 1}")
                nxt = self.b_reads(b + 1, lambda o: vr(BB + 8 * ((b + 1) & 1) + o, 2))
            for n in range(4):
                rf, ct = n >> 1, n & 1
                d = vr(ACC + 16 * n, 16)
                af = ar(A_RING + 8 * (b % A_DEPTH) + 4 * rf)
                bf = ar(8 * b + 4 * ct) if b < NB_REG else vr(BB + 8 * (b & 1) + 4 * ct)
                a(f"v_mfma_f32_32x32x16_bf16 {d}, {af}, {bf}, {d if b else 0}")
                if n < 2:
                    for x in nxt[2 * n:2 * n + 2]:
                        a(x)
                if ct == 1 and b + A_DEPTH < 36:
                    self.a_load(b + A_DEPTH, rf)
        self.ts("p2end")
        a(f"s_mov_b32 m0, s{sBA}")
        a(f"s_lshl_b32 s{sT0}, s{sRH}, 13")
        a(f"s_lshl_b32 s{sT1}, s{sCH}, 11")
        a(f"s_add_u32 s{sT0}, s{sT0}, s{sT1}")
        a(f"v_add_u32 v{vM}, s{sT0}, v{vL16}")
        a(f"v_bfe_u32 v10, v{vL}, 3, 1")
        a(f"v_lshrrev_b32 v11, 4, v{vL}")
        a(f"v_lshl_add_u32 v10, v10, 2, v11")
        a(f"v_and_b32 v11, 7, v{vL}")
        a(f"v_lshlrev_b32 v11, 3, v11")
        a(f"v_lshl_add_u32 v{vM + 1}, v10, 10, v11")
        a(f"s_lshl_b32 s{sT0}, s{sRT}, 16")
        a(f"s_lshl_b32 s{sT1}, s{sW}, 14")
        a(f"s_add_u32 s{sT0}, s{sT0}, s{sT1}")
        a(f"s_lshl_b32 s{sT1}, s{sCC}, 7")
        a(f"s_add_u32 s{sT0}, s{sT0}, s{sT1}")
        a(f"s_add_u32 s{sT1}, s{sT0}, 8192")
        for r in range(64):
            a(f"ds_write_addtid_b32 v{ACC + r} offset:{256 * r}")
        a.wait_all(vm=False)
        a("s_barrier")
        R = 80
        for u in range(4):
            i, ct = u >> 1, u & 1
            for p in range(4):
                a(f"ds_read_b128 {vr(R + 16 * u + 4 * p)}, v{vM} offset:{16384 * p + 4096 * ct + 1024 * i}")
        for u in range(4):
            i, ct = u >> 1, u & 1
            b = R + 16 * u
            for h in range(2):
                a(f"v_pk_add_f32 {vr(b + 2 * h, 2)}, {vr(b + 2 * h, 2)}, {vr(b + 4 + 2 * h, 2)}")
                a(f"v_pk_add_f32 {vr(b + 8 + 2 * h, 2)}, {vr(b + 8 + 2 * h, 2)}, {vr(b + 12 + 2 * h, 2)}")
            for h in range(2):
                a(f"v_pk_add_f32 {vr(b + 2 * h, 2)}, {vr(b + 2 * h, 2)}, {vr(b + 8 + 2 * h, 2)}")
            a(f"v_cvt_pk_bf16_f32 v{b}, v{b}, v{b + 1}")
            a(f"v_cvt_pk_bf16_f32 v{b + 1}, v{b + 2}, v{b + 3}")
            a(f"buffer_store_dwordx2 {vr(b, 2)}, v{vM + 1}, {srd(SOUT)}, s{sT1 if i else sT0} offen offset:{64 * ct}")
        if self.diag:
            self.ts("stored")
            a.wait_all()
            self.ts("end")
            a(f"s_memrealtime {sp(sTS + 6)}")
            self.ts_flush()
            for lane, r in ((60, sTS + 2), (61, sTS + 4), (62, sTS + 6), (63, sSPIN)):
                a(f"v_writelane_b32 v{vTS}, s{r}, {lane}")
            a(f"s_lshl_b32 s{sT0}, s2, 2")
            a(f"s_add_u32 s{sT0}, s{sT0}, s{sW}")
            a(f"s_lshl_b32 s{sT0}, s{sT0}, 8")
            a(f"s_add_u32 s{sT0}, s{sT0}, {WS_TS}")
            a(f"v_lshlrev_b32 v16, 2, v{vL}")
            a(f"buffer_store_dword v{vTS}, v16, {srd(SWS)}, s{sT0} offen")
        a("s_endpgm")

    def build(self):
        a = self.a
        self.prologue()
        st = a.state()
        for role in ("ffn", "att"):
            self.role = role
            if role == "att":
                a.label("L_att")
                a.set_state(st)
            self.ids(role)
            self.setup(role)
            self.main_loop(role)
            nb = self.ffn_epilogue() if role == "ffn" else self.att_epilogue()
            self.phase2(nb)
        a.label("L_exit")
        head = open("cdna_kernels/" + KNAME[:-7] + ".s.ref").read().split("; Override")[0]
        return (head + "; @launch grid=(256,1,1) block=(256,1,1) lds=163840\n"
                + '.amdgcn_target "amdgcn-amd-amdhsa--gfx950"\n.text\n'
                + f".globl {KNAME}\n.p2align 8\n.type {KNAME},@function\n{KNAME}:\n"
                + a.text() + "  s_endpgm\n"
                + f'.section .rodata,"a"\n.p2align 6\n.amdhsa_kernel {KNAME}\n'
                + "  .amdhsa_next_free_vgpr 512\n  .amdhsa_next_free_sgpr 102\n  .amdhsa_accum_offset 256\n"
                + "  .amdhsa_group_segment_fixed_size 0\n  .amdhsa_kernarg_size 80\n  .amdhsa_user_sgpr_count 2\n"
                + "  .amdhsa_user_sgpr_kernarg_segment_ptr 1\n  .amdhsa_system_sgpr_workgroup_id_x 1\n"
                + "  .amdhsa_float_denorm_mode_32 3\n.end_amdhsa_kernel\n")


if __name__ == "__main__":
    import json
    out = sys.argv[1]
    diag = len(sys.argv) > 2 and sys.argv[2] == "diag"
    cfg = json.loads(sys.argv[3]) if len(sys.argv) > 3 else None
    g = Gen(diag, cfg)
    txt = g.build()
    open(out, "w").write(txt)
    if diag:
        json.dump(g.tsn, open(out + ".json", "w"))
    print("instructions", len(g.a.out), "nop states", g.a.nops)
```

```python
import sys, json
from gen_kernel import *

SWA = 88
sPX, sPW, sPB, sPO, sNO2, sEX, cD0 = 47, 48, 49, 54, 55, 84, 86
sKV, sKS, sFL, sPH, sPG, sJ, sOM, sO0, sO1, sAP, sKV2 = 87, 92, 93, 94, 95, 96, 97, 98, 99, 100, 101
vPX, vPW, vPB, vE, vD = 248, 249, 250, 251, 252
vOMa, vOMw, vOMr, vOMv, vRa, vOa, vAP, vT16 = range(206, 214)
e0, e1, e2, e2x, e3, e4, e5, e6, e7, f0, f1, f3 = range(116, 128)
ONES = 4
KVP = 768


def lanes(n):
    if n == 64:
        return ["s_mov_b64 exec, -1"]
    if n < 32:
        return [f"s_mov_b64 exec, {(1 << n) - 1:#x}"]
    return ["s_mov_b32 exec_lo, -1", f"s_mov_b32 exec_hi, {(1 << (n - 32)) - 1:#x}"]


class Gen2(Gen):
    def __init__(self, diag=False, cfg=None):
        base = dict(npf0=3, split=7, cap=4, depth=8, apf=16, cpf=1, pipe=1, opoll=2,
                    bpf={"0": 2, "1": 2, "2": 2, "3": 2, "4": 3, "5": 3}, wopf="e1", st6=8)
        base.update(cfg or {})
        super().__init__(diag, base)
        self.a.pipe = bool(self.cfg["pipe"])

    def emit(self, items, tag=None):
        for x in items:
            if callable(x):
                x()
            elif isinstance(x, tuple):
                self.a(*x)
            else:
                self.a(x, tag)

    def common(self):
        a = self.a
        a("s_cmp_ge_u32 s2, 256")
        a("s_cbranch_scc1 L_exit")
        if self.diag:
            a(f"s_memrealtime {sp(sTS + 2)}")
            a(f"s_memtime {sp(sTS + 4)}")
        for r, off in ((SX, 0), (SW, 32), (SWA, 8), (SWS, 72), (SW2, 40), (SWO, 16), (SDBG, 64), (SG, 48), (SOUT, 56)):
            a(f"s_load_dwordx2 {sp(r)}, s[0:1], {off}")
        if self.cfg["cpf"]:
            a(f"s_getpc_b64 {sp(sT0)}")
            a.label("L_pc")
            a("s_bitcmp1_b32 s2, 3")
            a(f"s_cselect_b32 s{sT2}, L_att_rest-L_pc, 0")
            a(f"s_lshr_b32 s{sT3}, s2, 4")
            a(f"s_lshl_b32 s{sT3}, s{sT3}, 11")
            a(f"s_add_u32 s{sT2}, s{sT2}, s{sT3}")
            a("v_lshrrev_b32 v4, 4, v0")
            a("v_and_b32 v5, 3, v0")
            a("v_add_u32 v4, v4, v5")
            a(f"v_lshl_add_u32 v4, v4, 7, s{sT2}")
            a("v_min_u32 v4, L_exit-L_pc, v4")
            a(f"v_mov_b32 v5, s{sT1}")
            a(f"v_add_co_u32 v4, vcc, s{sT0}, v4")
            a("v_addc_co_u32 v5, vcc, 0, v5, vcc")
            a("s_mov_b64 exec, 0xf")
            a(f"global_load_dword v{vD}, v[4:5], off", "PFc")
            a("s_mov_b64 exec, -1")
        self.emit([
            "v_lshrrev_b32 v4, 6, v0",
            f"v_and_b32 v{vL}, 63, v0",
            f"v_readfirstlane_b32 s{sW}, v4",
            f"s_and_b32 s{sT0}, s2, 1",
            f"s_lshl_b32 s{sT0}, s{sT0}, 3",
            f"s_lshr_b32 s{sRB}, s2, 5",
            f"s_add_u32 s{sRB}, s{sRB}, s{sT0}",
            f"s_and_b32 s{sT0}, s2, 6",
            f"s_bfe_u32 s{sCOL}, s2, 0x10004",
            f"s_add_u32 s{sCOL}, s{sCOL}, s{sT0}",
            f"v_lshrrev_b32 v4, 3, v{vL}",
            f"v_lshrrev_b32 v5, 4, v{vL}",
            f"v_and_b32 v6, 7, v{vL}",
            "v_xor_b32 v7, v5, v6",
            "v_lshlrev_b32 v7, 4, v7",
            f"v_lshl_add_u32 v{vDX}, v4, 10, v7",
            f"v_xor_b32 v{vDX + 1}, 64, v{vDX}",
            f"v_add_u32 v{vDX + 1}, 7168, v{vDX + 1}",
            f"v_add_u32 v{vDX + 2}, 14336, v{vDX}",
            f"v_add_u32 v{vDX + 3}, 14336, v{vDX + 1}",
            f"s_lshl_b32 s{sPX}, s{sRB}, 17",
            f"s_lshl_b32 s{sT0}, s{sW}, 15",
            f"s_add_u32 s{sOX}, s{sPX}, s{sT0}",
            f"s_lshl_b32 s{sMX}, s{sW}, 12",
            f"s_bfe_u32 s{sT0}, s2, 0x20003",
            f"s_lshl2_add_u32 s{sT0}, s{sT0}, s{sW}",
            f"s_lshl_b32 s{sT0}, s{sT0}, 13",
            f"s_add_u32 s{sPX}, s{sPX}, s{sT0}",
            f"v_lshlrev_b32 v7, 7, v4",
            f"v_lshl_add_u32 v{vPX}, v6, 10, v7",
            f"v_lshlrev_b32 v{vL16}, 4, v{vL}",
            f"s_mov_b32 s{SX + 2}, {2048 * 1024}",
            f"s_mov_b32 s{SX + 3}, 0x20000",
            "v_lshlrev_b32 v8, 2, v5",
            "v_and_b32 v8, 4, v8",
            "v_xor_b32 v8, v8, v6",
            "v_lshlrev_b32 v8, 4, v8",
            f"s_lshr_b32 s{sPW}, s2, 4",
            f"s_lshl2_add_u32 s{sPW}, s{sPW}, s{sW}",
            f"s_bfe_u32 s{sT1}, s2, 0x20001",
            "s_bitcmp0_b32 s2, 3",
            "s_cbranch_scc1 L_ffn"])

    def stage_items(self, role, s):
        sw = SW if role == "ffn" else SWA
        base = STAGE[s % 3]
        xs = [f"buffer_load_dwordx4 v{vDX + i}, {srd(SX)}, s{sOX} offen offset:{1024 * i} lds" for i in range(4)]
        n = 7 if role == "ffn" else 6
        ws = [f"buffer_load_dwordx4 v{vDW + m}, {srd(sw)}, s{sOW} offen offset:{1024 * (m % 4)} lds" for m in range(n)]
        slots = [[f"s_add_u32 m0, s{sMX}, {base}", xs[0]], [xs[1]], [xs[2]], [xs[3], f"s_add_u32 s{sOX}, s{sOX}, 128"]]
        for m, t in enumerate(ws):
            pre = [f"s_add_u32 m0, s{sMW}, {base + 16384 + 1024 * m}"] if m in (0, 4) else []
            post = [f"s_add_u32 s{sOW}, s{sOW}, {64 * self.pitch}"] if m == n - 1 else []
            slots.append(pre + [t] + post)
        return [[(x, f"S{s}") for x in sl] for sl in slots]

    def pf_xw(self, role, s0, n):
        sw = SW if role == "ffn" else SWA
        return (lanes(8 * n)
                + [(f"buffer_load_dword v{vD}, v{vPX}, {srd(SX)}, s{sPX} offen offset:{128 * s0}", "PF"),
                   (f"buffer_load_dword v{vD + 1}, v{vPW}, {srd(sw)}, s{sPW} offen", "PF")])

    def pf_b(self, where):
        n = self.cfg["bpf"].get(str(where), 0)
        out = []
        if n:
            out += lanes(8 * n) + [(f"buffer_load_dword v{vD + 2}, v{vPB}, {srd(SW2)}, s{sPB} offen", "PF"),
                                   f"s_add_u32 s{sPB}, s{sPB}, {n * 32768}"]
            self.bpf_done += n
        if str(self.cfg["wopf"]) == str(where):
            out += lanes(32)
            out += [(f"buffer_load_dword v{vD + 2}, v{vPB}, {srd(SWO)}, s{sPO} offen", "PF")]
        return out

    def early(self, role):
        a = self.a
        ffn = role == "ffn"
        sw, pitch = (SW, 3584) if ffn else (SWA, 3072)
        self.emit([
            f"s_mul_i32 s{sPW}, s{sPW}, {pitch}",
            f"s_mul_i32 s{sT1}, s{sT1}, {896 if ffn else 256}",
            f"s_add_u32 s{sPW}, s{sPW}, s{sT1}",
            f"v_mul_u32_u24 v{vPW}, {64 * pitch}, v4",
            f"v_min_u32 v9, {6 if ffn else 5}, v6"])
        if not ffn:
            self.emit(["v_lshrrev_b32 v10, 1, v9", "v_and_b32 v9, 1, v9", f"v_lshl_add_u32 v{vPW}, v10, 10, v{vPW}"])
        self.emit([
            f"v_lshl_add_u32 v{vPW}, v9, 7, v{vPW}",
            f"s_mul_i32 s{sOW}, s{sW}, {16 * pitch}",
            f"s_mul_i32 s{sT0}, s{sCOL}, {448 if ffn else 128}",
            f"s_add_u32 s{sOW}, s{sOW}, s{sT0}",
            f"s_mul_i32 s{sMW}, s{sW}, {7168 if ffn else 6144}",
            f"s_mov_b32 s{sw + 2}, {512 * pitch}",
            f"s_mov_b32 s{sw + 3}, 0x20000"])
        if ffn:
            a(f"s_movk_i32 s{sT0}, 3136")
            a(f"v_mul_u32_u24 v9, 9363, v{vL}")
            a(f"v_add_u32 v11, 4096, v{vL16}")
            for m in range(7):
                if m:
                    a(f"v_add_u32 v9, {64 * 9363}, v9")
                a(f"v_lshrrev_b32 v10, 18, v9")
                a(f"v_mad_u32_u24 v{vDW + m}, v10, s{sT0}, v{11 if m >= 4 else vL16}")
        else:
            a(f"v_mul_u32_u24 v9, 3072, v4")
            a(f"v_add_u32 v9, v9, v8")
            for m in range(6):
                off = (m & 1) * 8 * 3072 + (1024, 2048, 0)[m >> 1] - 1024 * (m % 4)
                a(f"v_add_u32 v{vDW + m}, {off}, v9")
        a.wait_all(vm=False)
        self.ts("karg")
        n0 = self.cfg["npf0"]
        if n0:
            self.emit(self.pf_xw(role, 0, n0) + ["s_mov_b64 exec, -1"])
        self.s0 = self.stage_items(role, 0)
        for sl in self.s0[:self.cfg["split"]]:
            self.emit(sl)

    def setup(self, role):
        a = self.a
        ffn = role == "ffn"
        n0 = self.cfg["npf0"]
        self.emit([
            f"s_lshr_b32 s{sRH}, s{sW}, 1",
            f"s_and_b32 s{sCH}, s{sW}, 1",
            f"s_add_u32 s{sPW}, s{sPW}, {n0 * 64 * self.pitch}",
            f"v_and_b32 v10, 31, v{vL}",
            f"v_lshrrev_b32 v11, 5, v{vL}",
            f"v_bfe_u32 v12, v{vL}, 1, 3",
            "v_xor_b32 v12, v12, v11",
            "v_lshlrev_b32 v12, 4, v12",
            "v_lshl_add_u32 v12, v10, 7, v12",
            f"s_add_u32 s{sT0}, s{sMX}, {STAGE[0]}",
            f"s_xor_b32 s{sT1}, s{sMX}, 4096",
            f"s_add_u32 s{sT1}, s{sT1}, {STAGE[0]}"])
        for t in range(4):
            a(f"v_xor_b32 v13, {32 * t}, v12")
            a(f"v_add_u32 v{vXA + t}, s{sT0}, v13")
            a(f"v_add_u32 v{vXB + t}, s{sT1}, v13")
        self.emit([
            f"v_bfe_u32 v13, v{vL}, 2, 2",
            f"v_bfe_u32 v14, v{vL}, 4, 1",
            "v_lshlrev_b32 v14, 5, v14",
            f"v_and_b32 v15, 3, v{vL}",
            "v_lshl_add_u32 v14, v15, 3, v14",
            "v_lshl_add_u32 v15, v11, 3, v13"])
        if ffn:
            self.emit([
                "v_mul_u32_u24 v15, 448, v15",
                "v_add_u32 v15, v15, v14",
                f"v_add_u32 v{vW3}, {STAGE[0] + 16384 + 192}, v15",
                f"s_lshl_b32 s{sT0}, s{sCH}, 8",
                f"s_add_u32 s{sT0}, s{sT0}, {STAGE[0] + 16384}",
                f"v_add_u32 v{vW}, s{sT0}, v15"])
        else:
            self.emit([
                "v_lshl_add_u32 v15, v15, 7, v14",
                "v_lshrrev_b32 v9, 1, v13",
                f"v_xor_b32 v9, s{sCH}, v9",
                "v_lshl_add_u32 v15, v9, 6, v15",
                f"v_add_u32 v{vW}, {STAGE[0] + 16384}, v15",
                f"v_lshrrev_b32 v9, 2, v{vL}",
                "v_xor_b32 v9, v9, v5",
                "v_and_b32 v9, 1, v9",
                "v_lshlrev_b32 v9, 10, v9",
                "v_lshl_add_u32 v9, v11, 4, v9",
                f"v_add_u32 v{vW3}, {L_T0}, v9"])
            for r in range(TMP, TMP + 4):
                a(f"v_mov_b32 v{r}, 0")
            a(f"v_add_u32 v9, {L_T0 + 1024}, v{vL16}")
            a(f"ds_write_b128 v9, {vr(TMP)}", "zero")
        for s, n in ((SWS, WS_BYTES), (SW2, 1792 * 1024), (SWO, 512 * 1024), (SDBG, 256), (SG, 1024)):
            a(f"s_mov_b32 s{s + 2}, {n}")
            a(f"s_mov_b32 s{s + 3}, 0x20000")
        self.emit([
            f"v_mov_b32 v{vZ}, 0",
            f"v_lshlrev_b32 v9, 7, v6",
            f"v_lshl_add_u32 v{vPB}, v4, 15, v9",
            f"s_bfe_u32 s{sT0}, s2, 0x30003",
            f"s_lshl2_add_u32 s{sT0}, s{sT0}, s{sW}",
            f"s_lshr_b32 s{sT1}, s2, 6",
            f"s_mul_i32 s{sPB}, s{sT1}, 448",
            f"s_add_u32 s{sPB}, s{sPB}, s{sT0}",
            f"s_lshl_b32 s{sPB}, s{sPB}, 10",
            f"s_lshl_b32 s{sPO}, s{sT1}, 7",
            f"s_add_u32 s{sPO}, s{sPO}, s{sT0}",
            f"s_lshl_b32 s{sPO}, s{sPO}, 10"])
        if ffn:
            self.emit([f"s_or_b32 s{sT0}, s2, s{sW}", f"s_cmp_eq_u32 s{sT0}, 0",
                       f"s_cselect_b32 s{sEX}, 1, 0", f"s_mov_b32 s{sEX + 1}, 0"])
        self.ts("setup")
        sl = self.s0[self.cfg["split"]:]
        if sl and not any("m0," in x for x, _ in sl[0]):
            assert self.cfg["split"] > 4
        for x in sl:
            self.emit(x)
        if not ffn:
            a(f"s_mov_b32 m0, {L_T0}")
            a(f"buffer_load_dwordx4 v{vL16}, {srd(SG)}, 0 offen lds", "S0")
        for x in self.stage_items(role, 1):
            self.emit(x)
        tail = []
        if n0 < 4:
            tail += self.pf_xw(role, n0, 4 - n0) + [f"s_add_u32 s{sPW}, s{sPW}, {(4 - n0) * 64 * self.pitch}"]
        tail += self.pf_b("p")
        if ffn:
            tail += [f"s_mov_b64 exec, {sp(sEX)}", (f"buffer_load_dword v{vE}, v{vZ}, {srd(SWS)}, 0 offen sc1", "E")]
        self.emit(tail + ["s_mov_b64 exec, -1"] * bool(tail))

    def fillers(self, role):
        f = []
        for c, val in ((cM16, 0xFFFF0000), (cNL2E, 0xBFB8AA3B), (cONE, 0x3F800000), (cEPS, 0x358637BD),
                       (cL2E, 0x3FB8AA3B)):
            f += [f"s_mov_b32 s{c}, {val:#x}", f"s_mov_b32 s{c + 1}, {val:#x}"]
        f += [f"s_mov_b32 s{cD0}, 0x3f80",
              f"s_mov_b32 s{sSPIN}, {self.cfg['spin']}",
              f"s_mov_b32 s{SOUT + 2}, {2048 * 1024}",
              f"s_mov_b32 s{SOUT + 3}, 0x20000",
              f"s_and_b32 s{sRT}, s2, 7",
              f"s_lshr_b32 s{sT0}, s2, 6",
              f"s_lshl2_add_u32 s{sRT}, s{sRT}, s{sT0}",
              f"s_bfe_u32 s{sCC}, s2, 0x30003",
              f"v_lshl_add_u32 v{vDB}, v4, 10, v8",
              f"v_add_u32 v{vDB + 1}, 7168, v{vDB}",
              f"s_mul_i32 s{sOB}, s{sW}, {448 * 1024}",
              f"s_lshl_b32 s{sT0}, s{sCC}, 7",
              f"s_add_u32 s{sOB}, s{sOB}, s{sT0}",
              f"s_lshl_b32 s{sBA}, s{sW}, 14",
              f"s_mul_i32 s{sBB}, s{sW}, {10 * K}",
              f"s_add_u32 s{sBB}, s{sBB}, {REGB}",
              "v_lshl_add_u32 v15, v11, 2, v13",
              "v_lshl_add_u32 v15, v15, 7, v14",
              "v_lshrrev_b32 v9, 1, v13",
              "v_lshl_add_u32 v15, v9, 6, v15",
              f"v_add_u32 v{vTA}, s{sBA}, v15",
              f"v_add_u32 v{vTB}, s{sBB}, v15",
              "v_xor_b32 v15, 64, v15",
              f"v_add_u32 v{vTA + 1}, s{sBA}, v15",
              f"v_add_u32 v{vTB + 1}, s{sBB}, v15",
              f"s_lshl1_add_u32 s{sT0}, s{sRB}, s{sRH}",
              f"s_lshl3_add_u32 s{sT0}, s{sT0}, s{sCOL}",
              f"s_lshl1_add_u32 s{sT0}, s{sT0}, s{sCH}",
              f"s_lshl_b32 s{sT0}, s{sT0}, 7",
              f"s_add_u32 s{sFL}, s{sT0}, {WS_HF if role == 'ffn' else WS_OF}",
              f"s_lshl2_add_u32 s{sT1}, s{sRB}, s{sW}",
              f"s_xor_b32 s{sT2}, s{sT1}, 1",
              f"s_mul_i32 s{sT1}, s{sT1}, {144 * K}",
              f"s_mul_i32 s{sT2}, s{sT2}, {144 * K}"]
        if role == "ffn":
            f += [f"s_mul_i32 s{sT0}, s{sCOL}, {14 * K}",
                  f"s_add_u32 s{sT0}, s{sT0}, {WS_A}",
                  f"s_add_u32 s{sH3}, s{sT1}, s{sT0}",
                  f"s_lshl_b32 s{sT3}, s{sCH}, 13",
                  f"s_add_u32 s{sHA}, s{sH3}, s{sT3}",
                  f"s_add_u32 s{sHB}, s{sT2}, s{sT0}",
                  f"s_add_u32 s{sHB}, s{sHB}, s{sT3}",
                  f"s_add_u32 s{sH3}, s{sH3}, {6 * K}"]
        else:
            f += [f"s_lshl1_add_u32 s{sT0}, s{sCOL}, s{sCH}",
                  f"s_lshl_b32 s{sT3}, s{sT0}, 11",
                  f"s_add_u32 s{sT3}, s{sT3}, {WS_A + 112 * K}",
                  f"s_add_u32 s{sHA}, s{sT1}, s{sT3}",
                  f"s_add_u32 s{sHB}, s{sT2}, s{sT3}",
                  f"s_lshl_b32 s{sT0}, s{sT0}, 13",
                  f"s_lshl1_add_u32 s{sT1}, s{sRB}, s{sRH}",
                  f"s_lshl_b32 s{sT1}, s{sT1}, 8",
                  f"s_add_u32 s{sT0}, s{sT0}, s{sT1}",
                  f"s_add_u32 s{sH3}, s{sT0}, {WS_OMG}",
                  f"v_and_b32 v12, 15, v{vL}",
                  "v_lshlrev_b32 v13, 8, v11",
                  "v_lshl_add_u32 v9, v12, 4, v13",
                  f"s_lshl_b32 s{sT0}, s{sW}, 11",
                  f"s_add_u32 s{sT0}, s{sT0}, {L_SCR}",
                  f"v_add_u32 v13, s{sT0}, v9",
                  f"s_lshl_b32 s{sT0}, s{sW}, 6",
                  f"s_add_u32 s{sT0}, s{sT0}, {L_T1}",
                  f"v_lshl_add_u32 v14, v11, 4, s{sT0}",
                  f"v_cndmask_b32 v{e0}, v13, v14, {sp(cM16)}",
                  "v_add_u32 v13, 1024, v13",
                  "v_add_u32 v14, 32, v14",
                  f"v_cndmask_b32 v{e1}, v14, v13, {sp(cM16)}",
                  f"s_lshl_b32 s{sT0}, s{sW}, 7",
                  f"s_add_u32 s{sT0}, s{sT0}, {L_T1 + 1024}",
                  f"v_lshl_add_u32 v{e2}, v10, 2, s{sT0}",
                  f"v_xor_b32 v{e2x}, 128, v{e2}",
                  f"s_lshl1_add_u32 s{sT1}, s{sCH}, s{sRH}",
                  f"s_lshl_b32 s{sT0}, s{sT1}, 10",
                  f"s_add_u32 s{sT0}, s{sT0}, {L_SCR}",
                  f"v_add_u32 v{e3}, s{sT0}, v{vL16}",
                  f"s_lshl_b32 s{sT0}, s{sT1}, 5",
                  f"s_add_u32 s{sT0}, s{sT0}, {L_T1}",
                  f"v_bfe_u32 v15, v{vL}, 3, 1",
                  "v_lshlrev_b32 v13, 9, v15",
                  "v_lshl_add_u32 v13, v6, 2, v13",
                  f"v_add_u32 v{e4}, s{sT0}, v13",
                  f"s_lshl2_add_u32 s{sT2}, s{sCOL}, s{sT1}",
                  f"s_mul_i32 s{sKV}, s{sT2}, {16 * KVP}",
                  f"s_add_u32 s{sKV}, s{sKV}, {WS_KV}",
                  f"s_add_u32 s{sKV2}, s{sKV}, {8 * KVP}",
                  f"s_mul_i32 s{sKS}, s{sRB}, {KVP}",
                  f"s_add_u32 s{sKS}, s{sKS}, s{sKV}",
                  f"v_mul_u32_u24 v{e6}, 12, v{vL}",
                  f"v_add_u32 v{e7}, {4 * KVP}, v{e6}",
                  f"s_lshl_b32 s{sT3}, s{sRH}, 8",
                  f"s_add_u32 s{sT3}, s{sT3}, {L_T1 + 1024}",
                  f"v_lshl_add_u32 v{e5}, v{vL}, 2, s{sT3}",
                  f"s_mul_i32 s{sT0}, s{sT1}, 576",
                  f"s_add_u32 s{sT0}, s{sT0}, {L_T1 + 1536}",
                  "v_lshlrev_b32 v13, 4, v10",
                  "v_lshl_add_u32 v13, v11, 3, v13",
                  f"v_add_u32 v{f0}, s{sT0}, v13",
                  f"v_bfe_u32 v13, v{vL}, 2, 1",
                  "v_lshlrev_b32 v13, 4, v13",
                  "v_lshl_add_u32 v13, v15, 3, v13",
                  f"v_and_b32 v14, 3, v{vL}",
                  "v_lshl_add_u32 v13, v14, 1, v13",
                  f"s_add_u32 s{sT0}, s{sT0}, 512",
                  f"v_add_u32 v{f1}, s{sT0}, v13",
                  f"s_mul_i32 s{sT0}, s{sCH}, 1152",
                  f"s_add_u32 s{sT0}, s{sT0}, {L_T1 + 1536}",
                  "v_lshlrev_b32 v14, 4, v11",
                  "v_add_u32 v14, 512, v14",
                  f"v_cndmask_b32 v13, v9, v14, {sp(cM16)}",
                  f"v_add_u32 v{f3}, s{sT0}, v13"]
        f += [f"v_and_b32 v{vPA}, 3, v{vL}",
              f"v_lshlrev_b32 v{vPA}, 7, v{vPA}",
              f"s_lshl2_add_u32 s{sT0}, s{sRT}, s{sW}",
              f"s_lshl_b32 s{sT0}, s{sT0}, 9",
              f"s_add_u32 s{sPH}, s{sT0}, {WS_HF}",
              f"s_add_u32 s{sPG}, s{sT0}, {WS_OF}",
              f"s_mul_i32 s{sA0}, s{sRT}, {288 * K}",
              f"s_mul_i32 s{sT0}, s{sW}, {28 * K}",
              f"s_add_u32 s{sA0}, s{sA0}, s{sT0}",
              f"s_add_u32 s{sA0}, s{sA0}, {WS_A}",
              f"s_add_u32 s{sA1}, s{sA0}, {144 * K}",
              f"s_lshl_b32 s{sT0}, s{sCC}, 7",
              f"s_add_u32 s{sAP}, s{sA0}, s{sT0}",
              f"s_mul_i32 s{sT1}, s{sW}, {20 * K}",
              f"s_sub_u32 s{sJ}, {88 * K}, s{sT1}",
              f"s_lshl_b32 s{sO0}, s{sRT}, 16",
              f"s_add_u32 s{sO0}, s{sO0}, s{sT0}",
              f"s_add_u32 s{sO0}, s{sO0}, s{sBA}",
              f"s_add_u32 s{sO1}, s{sO0}, 8192",
              f"s_lshl_b32 s{sT0}, s{sW}, 15",
              f"s_lshl_b32 s{sT2}, s{sRT}, 8",
              f"s_add_u32 s{sT0}, s{sT0}, s{sT2}",
              f"s_add_u32 s{sOM}, s{sT0}, {WS_OMG}",
              f"s_lshl_b32 s{sT0}, s{sW}, 8",
              f"s_add_u32 s{sT0}, s{sT0}, {L_T0}",
              f"v_lshlrev_b32 v{vOMa}, 2, v{vL}",
              f"v_add_u32 v{vOMw}, s{sT0}, v{vOMa}",
              f"v_lshl_add_u32 v{vOMr}, v11, 4, s{sT0}",
              f"s_lshl_b32 s{sT0}, s{sRH}, 13",
              f"s_lshl_b32 s{sT1}, s{sCH}, 11",
              f"s_add_u32 s{sT0}, s{sT0}, s{sT1}",
              f"v_add_u32 v{vRa}, s{sT0}, v{vL16}",
              "v_and_b32 v9, 1, v4",
              "v_lshl_add_u32 v9, v9, 2, v5",
              "v_lshlrev_b32 v13, 3, v6",
              f"v_lshl_add_u32 v{vOa}, v9, 10, v13",
              f"v_and_b32 v9, 1, v{vL}",
              f"v_mul_u32_u24 v9, {144 * K}, v9",
              f"v_lshrrev_b32 v13, 1, v{vL}",
              f"v_lshl_add_u32 v{vAP}, v13, 10, v9"]
        if role == "att":
            f += [f"v_mov_b32 v{ONES + i}, 0x3f803f80" for i in range(4)]
        return f

    def b_pair(self, b):
        pre = [lambda: self.a.wait_lg(f"M{b - NB_REG}")] if b >= NB_REG else []
        s0, s1 = [[(x, f"B{b}") for x in sl] for sl in self.b_dma(b)]
        return [pre + s0, s1]

    def move_pair(self, b):
        r = [(x, f"M{b}") for x in self.b_reads(b, lambda o: ar(8 * b + o, 2))]
        return [[lambda: self.a.wait_vm(f"B{b}")] + r[:2], r[2:]]

    def stage(self, role, s):
        a = self.a
        plan = {(t, g): [] for t in range(4) for g in range(7)}
        for t in range(3):
            for g, grp in enumerate(self.reads(role, t + 1)):
                plan[t, g] += grp
        plan[3, 1] += [lambda: a.wait_vm(f"S{s + 1}"), "s_barrier"]
        if s < 7:
            for g, grp in enumerate(self.reads(role, 0)):
                plan[3, g + 1] += grp
        pos = [(t, g) for t in range(3) for g in (1, 3, 5, 6)] + [(3, g) for g in range(2, 6)]
        n6 = self.cfg["st6"]
        if s < 6:
            slots = self.stage_items(role, s + 2)
        elif s == 6:
            slots = [sl for b in range(n6) for sl in self.b_pair(b)]
        else:
            slots = [sl for b in range(n6, 13) for sl in self.b_pair(b)]
            slots += [[]] * (12 - len(slots)) + self.b_pair(13) + self.b_pair(14)
        assert len(slots) <= len(pos)
        for p, sl in zip(pos, slots):
            pre = [x for x in sl if isinstance(x, tuple) and x[0].startswith("s_add_u32 m0")]
            at = 2 if p == (3, 1) else 0
            plan[p][at:at] = pre
            plan[p] += [x for x in sl if x not in pre]
        if s < 7:
            d = DELTA[s % 3] & 0xFFFFFFFF
            add = lambda r: f"v_add_u32 v{r}, {d:#x}, v{r}"
            plan[0, 0] += [add(vXA)]
            plan[0, 2] += [add(vXB)]
            plan[0, 4] += [add(vXA + 1), add(vXB + 1)]
            plan[1, 4] += [add(vXA + 2), add(vXB + 2)]
            plan[2, 4] += [add(vXA + 3), add(vXB + 3)]
            plan[2, 5] += [add(vW)]
            plan[2, 6] += [add(vW3) if role == "ffn" else f"v_add_u32 v{vW3}, 128, v{vW3}"]
        pf = []
        if s < 4:
            pf += self.pf_xw(role, s + 4, 1)
            plan[3, 0] += []
        pf += self.pf_b(s)
        if pf:
            plan[3, 6 if role == "ffn" else 5] += pf + ["s_mov_b64 exec, -1"]
        if 0 < s < 4:
            plan[3, 0] += [f"s_add_u32 s{sPW}, s{sPW}, {64 * self.pitch}"]
        if s == 2 and role == "ffn":
            plan[1, 0] += [f"v_add_u32 v{vE}, 1, v{vE}", f"v_max_u32 v{vE}, 1, v{vE}"]
            plan[1, 2] += [f"s_mov_b64 exec, {sp(sEX)}",
                           (f"buffer_store_dword v{vE}, v{vZ}, {srd(SDBG)}, 0 offen sc1", "E"),
                           (f"buffer_store_dword v{vE}, v{vZ}, {srd(SWS)}, 0 offen sc1", "E"),
                           "s_mov_b64 exec, -1"]
        if s == 6:
            plan[0, 0] += [(f"buffer_load_dword v{vNO}, v{vZ}, {srd(SDBG)}, 0 offen sc1", "nonce")]
        if s == 7:
            mv = [x for b in range(self.cfg.get("mv7", 6)) for x in self.move_pair(b)]
            mpos = [(t, g) for t in range(3) for g in (5, 6)][self.cfg.get("mv7skip", 0):] + [(3, g) for g in range(7)]
            while mv:
                for p in mpos:
                    if mv:
                        plan[p] += mv.pop(0)
                mpos = mpos[-7:]
        for t in range(4):
            a.lg = self.retag(self.retag(a.lg, "r0", "o0"), "r1", "o1")
            if t == 3:
                a.wait_lg("o0", "o1")
            for g, m in enumerate(self.mfmas(role, t)):
                if g == 0:
                    a.wait_lg("o0")
                if g == 4:
                    a.wait_lg("o1")
                if s == 0 and t == 0:
                    m = m.rsplit(",", 1)[0] + ", 0"
                a(m)
                self.emit(plan[t, g])
                cap = self.cfg["cap"] - (2 if role == "att" and g == 6 else 0)
                room = cap - len([x for x in plan[t, g] if not callable(x)])
                while room > 0 and self.fill and (s or t):
                    a(self.fill.pop(0))
                    room -= 1

    def main_loop(self, role):
        a = self.a
        self.fill = self.fillers(role)
        for _ in range(self.cfg.get("nsetup", 0)):
            a(self.fill.pop(0))
        self.ts("issued")
        a.wait_lg("zero")
        a.wait_vm("S0")
        a("s_barrier")
        self.ts("s0rdy")
        for grp in self.reads(role, 0):
            self.emit(grp)
        for s in range(8):
            if s == 6:
                assert not self.fill, len(self.fill)
            self.stage(role, s)
            if s < 7:
                self.ts(f"st{s}")
        self.ts("loopend")

    def spin(self, check, reload, branch_ok, branch_retry):
        a = self.a
        done, retry = self.lab("ok"), self.lab("retry")
        for x in check:
            a(x)
        a.raw(f"{branch_ok} {done}")
        a.label(retry)
        a.raw(f"s_sub_u32 s{sSPIN}, s{sSPIN}, 1")
        a.raw(f"s_cmp_lt_i32 s{sSPIN}, 0")
        a.raw(f"s_cbranch_scc1 {done}")
        for x in [reload] if isinstance(reload, str) else reload:
            a.raw(x)
        a.raw("s_waitcnt vmcnt(0)")
        for x in check:
            a.raw(x)
        a.raw(f"{branch_retry} {retry}")
        a.label(done)

    def bg(self, dmas=(), moves=(), where=None):
        out = []
        for b in dmas:
            out += sum(self.b_pair(b), [])
        if where is not None:
            pf = self.pf_b(where)
            out += pf + ["s_mov_b64 exec, -1"] * bool(pf)
        for b in moves:
            out += sum(self.move_pair(b), [])
        return out

    def ffn_epilogue(self):
        a = self.a
        m7 = self.cfg.get("mv7", 6)
        todo = list(range(m7, 18))
        nb = 15
        pend = []
        for n in range(14):
            k, half = n >> 1, n & 1
            src = ACC + 16 * k + 8 * half
            t = TMP + 8 * (n & 1)
            o = TMP + 16 + 4 * (n % 3)
            if n and n % 4 == 0:
                self.ts(f"silu{n}")
            self.emit(self.bg([nb]))
            nb += 1
            for i in range(4):
                a(f"v_pk_mul_f32 {vr(t + 2 * i, 2)}, {vr(src + 2 * i, 2)}, {sp(cNL2E)}")
            for i in range(8):
                a(f"v_exp_f32 v{t + i}, v{t + i}")
            for i in range(4):
                a(f"v_pk_add_f32 {vr(t + 2 * i, 2)}, {vr(t + 2 * i, 2)}, {sp(cONE)}")
            if n < 2:
                self.emit(self.bg([nb]))
                nb += 1
            self.emit(self.bg([], todo[:2], f"e{n}"))
            todo = todo[2:]
            for i in range(8):
                a(f"v_rcp_f32 v{t + i}, v{t + i}")
            for i in range(4):
                a(f"v_pk_mul_f32 {vr(t + 2 * i, 2)}, {vr(t + 2 * i, 2)}, {vr(src + 2 * i, 2)}")
            for i in range(4):
                a(f"v_cvt_pk_bf16_f32 v{o + i}, v{t + 2 * i}, v{t + 2 * i + 1}")
            if n == 8:
                a(f"s_add_u32 s{sHA}, s{sHA}, 4096")
                a(f"s_add_u32 s{sHB}, s{sHB}, 4096")
            so = sH3 if k == 6 else (sHB if k & 1 else sHA)
            off = 1024 * half + (2048 if k in (2, 3) else 0)
            pend.append(f"buffer_store_dwordx4 {vr(o)}, v{vL16}, {srd(SWS)}, s{so} offen offset:{off} sc1")
            if n:
                self.emit(pend, "H")
                pend = []
            if n == 6:
                self.get_nonce()
        self.ts("pub")
        self.emit(self.bg(range(nb, 36)))
        a.wait_vm("H")
        self.set_flag(sFL)
        self.ts("flag")
        a(self.poll_load(sPH), "poll")

    def phi(self, src, dst, n, bg1=(), bg2=(), bg3=()):
        a = self.a
        t = TMP + 16 * (n & 1)
        u = t + 8
        for i in range(4):
            a(f"v_pk_mul_f32 {vr(t + 2 * i, 2)}, {vr(src + 2 * i, 2)}, {sp(cL2E)}")
        for i in range(4):
            a(f"v_pk_add_f32 {vr(u + 2 * i, 2)}, {vr(src + 2 * i, 2)}, {sp(cEPS)}")
        self.emit(bg1)
        for i in range(8):
            a(f"v_exp_f32 v{t + i}, v{t + i} clamp")
        self.emit(bg2)
        for i in range(8):
            a(f"v_max_f32 v{u + i}, s{cEPS}, v{u + i}")
        self.emit(bg3)
        for i in range(4):
            a(f"v_pk_add_f32 {vr(t + 2 * i, 2)}, {vr(t + 2 * i, 2)}, {vr(u + 2 * i, 2)}")
        for i in range(4):
            a(f"v_cvt_pk_bf16_f32 v{dst + i}, v{t + 2 * i}, v{t + 2 * i + 1}")

    def att_epilogue(self):
        a = self.a
        KA, VA, QA, LG = ACC, ACC + 32, ACC + 64, ACC + 96
        PK, PV, KV, ZZ, MM = 128, 144, 16, 168, 48
        G, GB, GO = 164, 165, 166
        m7 = self.cfg.get("mv7", 6)
        todo = list(range(m7, 18))
        take = lambda k: [todo.pop(0) for _ in range(min(k, len(todo)))]
        cv = lambda n: [f"v_cvt_pk_bf16_f32 v{PV + i}, v{VA + 2 * i}, v{VA + 2 * i + 1}" for i in range(4 * n, 4 * n + 4)]
        mk = lambda n: f"v_mfma_f32_32x32x16_bf16 {vr(KV, 16)}, {vr(PK + 4 * n)}, {vr(PV + 4 * n)}, {vr(KV, 16) if n else 0}"
        mz = lambda n: f"v_mfma_f32_32x32x16_bf16 {vr(ZZ, 16)}, {vr(PK + 4 * n)}, {vr(ONES)}, {vr(ZZ, 16) if n else 0}"
        gate = [f"v_mul_f32 v{G}, s{cNL2E}, v{LG}", f"v_exp_f32 v{G}, v{G}", f"v_add_f32 v{G}, 1.0, v{G}",
                f"v_rcp_f32 v{G}, v{G}", f"ds_write_b32 v{e2}, v{G}"]
        self.phi(KA, PK, 0, self.bg([15]), self.bg([16], take(2), "e0"), cv(0))
        self.phi(KA + 8, PK + 4, 1, self.bg([17]) + [mz(0)], self.bg([], take(2), "e1"), cv(1))
        self.get_nonce()
        a(f"s_and_b32 s{sNO2}, s{sNON}, 0xbfff")
        self.phi(KA + 16, PK + 8, 2, [mk(0)] + gate[:2], [mz(1)] + gate[2:4], [mk(1)] + cv(2))
        self.phi(KA + 24, PK + 12, 3, [mz(2), gate[4]], [mk(2), f"v_mov_b32 v{vT16}, s{sNO2}"], cv(3))
        a(mz(3))
        a(mk(3))
        self.emit(self.bg([], take(2)))
        for h in range(2):
            for r in range(8 * h, 8 * h + 8):
                x, y = (KV + r, ZZ + r) if h == 0 else (ZZ + r, KV + r)
                a(f"v_cndmask_b32 v{MM + r}, v{x}, v{y}, {sp(cM16)}")
                if r % 4 == 3:
                    a(f"ds_write_b128 v{e0 + h}, {vr(MM + r - 3)} offset:{512 * ((r >> 2) & 1)}")
        a.wait_all(vm=False)
        a("s_barrier")
        a(f"ds_read_b128 {vr(64)}, v{e3}")
        a(f"ds_read_b128 {vr(68)}, v{e3} offset:4096")
        a(f"ds_read_b32 v72, v{e4}")
        a(f"ds_read_b32 v73, v{e4} offset:128")
        a(f"ds_read_b32 v{GB}, v{e2x}")
        a(f"ds_read_b32 v{GO}, v{e5}")
        a(f"v_pk_add_f32 {vr(64, 2)}, {vr(64, 2)}, {vr(68, 2)}")
        a(f"v_pk_add_f32 {vr(66, 2)}, {vr(66, 2)}, {vr(70, 2)}")
        a(f"v_add_f32 v72, v72, v73")
        a(f"v_cvt_pk_bf16_f32 v64, v64, v65")
        a(f"v_cvt_pk_bf16_f32 v65, v66, v67")
        a(f"v_cvt_pk_bf16_f32 v66, v72, v72")
        a(f"v_and_or_b32 v66, v66, s{cM16}, v{vT16}")
        a(f"buffer_store_dwordx3 {vr(64, 3)}, v{e6}, {srd(SWS)}, s{sKS} offen sc1", "KV")
        self.ts("pub")
        PQ = 128
        nq = self.cfg.get("nq", [2, 2, 0, 0])
        nb = 18
        for n in range(4):
            self.phi(QA + 8 * n, PQ + 4 * n, n, self.bg(range(nb, nb + nq[n])), self.bg([], take(2), f"e{n + 2}"))
            nb += nq[n]
        a(f"v_sub_f32 v{GO}, 1.0, v{GO}")
        assert not todo
        self.ts("phiq")
        P0, S = 16, 96
        ld = lambda p: (f"buffer_load_dwordx3 {vr(P0 + 4 * p, 3)}, v{e7 if p & 4 else e6}, {srd(SWS)}, "
                        f"s{sKV2 if p & 8 else sKV} offen offset:{KVP * (p & 3)} sc1")
        for p in range(16):
            a(ld(p))
        a(f"buffer_store_dword v{GO}, v{vOMa}, {srd(SWS)}, s{sH3} offen sc1", "O")
        n1 = self.cfg.get("n1", 6)
        self.emit(self.bg(range(nb, nb + n1)))
        nb += n1
        self.ts("kvld")
        for h in range(2):
            ps = range(8 * h, 8 * h + 8)
            chk = [f"v_xor_b32 v9, s{sNO2}, v{P0 + 4 * ps[0] + 2}"]
            chk += [f"v_bitop3_b32 v9, s{sNO2}, v{P0 + 4 * p + 2}, v9 bitop3:0xbe" for p in ps[1:]]
            chk += ["v_cmp_ne_u16 vcc, 0, v9"]
            self.spin(chk, [ld(p) for p in ps], "s_cbranch_vccz", "s_cbranch_vccnz")
            self.ts(f"kv{h}")
            for p in ps:
                w = P0 + 4 * p
                if p == 0:
                    self.emit([f"v_lshlrev_b32 v{S}, 16, v{w}", f"v_and_b32 v{S + 1}, s{cM16}, v{w}",
                               f"v_lshlrev_b32 v{S + 2}, 16, v{w + 1}", f"v_and_b32 v{S + 3}, s{cM16}, v{w + 1}",
                               f"v_and_b32 v{S + 4}, s{cM16}, v{w + 2}"])
                else:
                    for i in range(5):
                        a(f"v_dot2c_f32_bf16 v{S + i}, s{cONE if i & 1 or i == 4 else cD0}, v{w + (i >> 1)}")
                if h and p % 2 == 0 and nb < 36 and self.cfg.get("n2", 1):
                    self.emit(self.bg([nb]))
                    nb += 1
        a(f"v_cvt_pk_bf16_f32 v{S}, v{S}, v{S + 1}")
        a(f"v_cvt_pk_bf16_f32 v{S + 1}, v{S + 2}, v{S + 3}")
        a(f"v_cvt_pk_bf16_f32 v{S + 4}, v{S + 4}, v{S + 4}")
        a(f"ds_write_b64 v{f0}, {vr(S, 2)}")
        a("s_mov_b64 exec, 0xffff")
        a(f"ds_write_b16 v{f1}, v{S + 4}")
        a("s_mov_b64 exec, -1")
        self.ts("kvsum")
        a.wait_all(vm=False)
        a("s_barrier")
        F = 144
        a(f"ds_read_b128 {vr(F)}, v{f3}")
        a(f"ds_read_b128 {vr(F + 4)}, v{f3} offset:576")
        for n in range(4):
            rf, h = n >> 1, n & 1
            a(f"v_mfma_f32_32x32x16_bf16 {vr(16 + 16 * n, 16)}, {vr(F + 4 * h)}, {vr(PQ + 8 * rf + 4 * h)}, 0")
        for n in range(4):
            rf, h = n >> 1, n & 1
            d = 16 + 16 * n
            o = TMP + 4 * n
            a(f"v_add_f32 v{d + 8}, s{cEPS}, v{d + 8}")
            a(f"v_rcp_f32 v{d + 8}, v{d + 8}")
            a(f"v_mul_f32 v{d + 8}, v{d + 8}, v{GB if rf else G}")
            for i in range(4):
                a(f"v_pk_mul_f32 {vr(d + 2 * i, 2)}, {vr(d + 2 * i, 2)}, {vr(d + 8, 2)} op_sel_hi:[1,0]")
            for i in range(4):
                a(f"v_cvt_pk_bf16_f32 v{o + i}, v{d + 2 * i}, v{d + 2 * i + 1}")
            a(f"buffer_store_dwordx4 {vr(o)}, v{vL16}, {srd(SWS)}, s{sHB if rf else sHA} offen offset:{1024 * h} sc1", "O")
        self.ts("ostored")
        a(self.poll_load(sPH), "poll")
        self.emit(self.bg(range(nb, 36)))
        a.wait_vm("O")
        self.set_flag(sFL)
        self.ts("oflag")

    def a_load(self, b, rf):
        a = self.a
        s = sA0 + rf
        r = b if b < 28 else b - 28
        if b == 28:
            a(f"s_add_u32 s{s}, s{s}, s{sJ}")
        elif r % 4 == 0 and r:
            a(f"s_add_u32 s{s}, s{s}, 4096")
        dst = ar(A_RING + 8 * (b % A_DEPTH) + 4 * rf)
        a(f"buffer_load_dwordx4 {dst}, v{vL16}, {srd(SWS)}, s{s} offen offset:{1024 * (r % 4)} sc1", f"A{b}")

    def a_pf(self, n):
        self.emit(lanes(2 * n) + [(f"buffer_load_dword v{vD}, v{vAP}, {srd(SWS)}, s{sAP} offen sc1", "PF"),
                                  "s_mov_b64 exec, -1", f"s_add_u32 s{sAP}, s{sAP}, {1024 * n}"])

    def phase2(self):
        a = self.a
        OM, BB = 80, 144
        D, pfd, op = self.cfg["depth"], self.cfg["apf"], self.cfg["opoll"]
        self.poll_check(sPH)
        self.ts("hpoll")
        if pfd:
            self.a_pf(pfd)
        for b in range(D):
            self.a_load(b, 0)
            self.a_load(b, 1)
        scale = lambda n: [f"v_pk_mul_f32 {vr(ACC + 16 * n + 2 * i, 2)}, {vr(ACC + 16 * n + 2 * i, 2)}, "
                           f"{vr(OM + 16 * (n >> 1) + 2 * i, 2)}" for i in range(8)]
        assert op + D <= 28 - D
        for b in range(36):
            if b in (0, 1, 4, 8, 12, 18, 24, 30):
                self.ts(f"b{b}")
            nxt = []
            if NB_REG <= b + 1 < 36:
                a.wait_vm(f"B{b + 1}")
                nxt = self.b_reads(b + 1, lambda o: vr(BB + 8 * ((b + 1) & 1) + o, 2))
            for n in range(4):
                rf, ct = n >> 1, n & 1
                d = vr(ACC + 16 * n, 16)
                af = ar(A_RING + 8 * (b % A_DEPTH) + 4 * rf)
                bf = ar(8 * b + 4 * ct) if b < NB_REG else vr(BB + 8 * (b & 1) + 4 * ct)
                a(f"v_mfma_f32_32x32x16_bf16 {d}, {af}, {bf}, {d if b else 0}")
                if n < 2:
                    self.emit(nxt[2 * n:2 * n + 2])
                if ct == 1 and b + D < 36:
                    self.a_load(b + D, rf)
                if (b, n) in ((27, 2), (27, 3), (28, 0), (28, 1)):
                    self.emit(scale((n + 2) & 3))
                if n == 2 and pfd and b % 4 == 0 and pfd < 28:
                    k = min(4, 28 - pfd)
                    self.a_pf(k)
                    pfd += k
                if n == 3 and b == op:
                    a(self.poll_load(sPG), "poll")
                if n == 2 and b == op + D:
                    self.poll_check(sPG)
                    self.ts("opoll")
                    a(f"buffer_load_dword v{vOMv}, v{vOMa}, {srd(SWS)}, s{sOM} offen sc1")
                    if pfd:
                        assert pfd == 28
                        a(f"s_add_u32 s{sAP}, s{sAP}, s{sJ}")
                        a(f"s_sub_u32 s{sAP}, s{sAP}, {4 * K}")
                        self.a_pf(8)
                if n == 2 and b == 24:
                    a(f"ds_write_b32 v{vOMw}, v{vOMv}", "om")
                if n >= 2 and b == 25:
                    a.wait_lg("om")
                    for q in range(4):
                        a(f"ds_read_b128 {vr(OM + 16 * rf * ct + 4 * q)}, v{vOMr} offset:{128 * ct + 32 * q}")
        self.ts("p2end")
        a(f"s_mov_b32 m0, s{sBA}")
        for r in range(64):
            a(f"ds_write_addtid_b32 v{ACC + r} offset:{256 * r}")
        a.wait_all(vm=False)
        a("s_barrier")
        R = 80
        for u in range(4):
            i, ct = u >> 1, u & 1
            for p in range(4):
                a(f"ds_read_b128 {vr(R + 16 * u + 4 * p)}, v{vRa} offset:{16384 * p + 4096 * ct + 1024 * i}")
        for u in range(4):
            i, ct = u >> 1, u & 1
            b = R + 16 * u
            for h in range(2):
                a(f"v_pk_add_f32 {vr(b + 2 * h, 2)}, {vr(b + 2 * h, 2)}, {vr(b + 4 + 2 * h, 2)}")
                a(f"v_pk_add_f32 {vr(b + 8 + 2 * h, 2)}, {vr(b + 8 + 2 * h, 2)}, {vr(b + 12 + 2 * h, 2)}")
            for h in range(2):
                a(f"v_pk_add_f32 {vr(b + 2 * h, 2)}, {vr(b + 2 * h, 2)}, {vr(b + 8 + 2 * h, 2)}")
            a(f"v_cvt_pk_bf16_f32 v{b}, v{b}, v{b + 1}")
            a(f"v_cvt_pk_bf16_f32 v{b + 1}, v{b + 2}, v{b + 3}")
            a(f"buffer_store_dwordx2 {vr(b, 2)}, v{vOa}, {srd(SOUT)}, s{sO1 if i else sO0} offen offset:{64 * ct}")
        if self.diag:
            self.ts("stored")
            a.wait_all()
            self.ts("end")
            a(f"s_memrealtime {sp(sTS + 6)}")
            self.ts_flush()
            for lane, r in ((60, sTS + 2), (61, sTS + 4), (62, sTS + 6), (63, sSPIN)):
                a(f"v_writelane_b32 v{vTS}, s{r}, {lane}")
            a(f"s_lshl2_add_u32 s{sT0}, s2, s{sW}")
            a(f"s_lshl_b32 s{sT0}, s{sT0}, 8")
            a(f"s_add_u32 s{sT0}, s{sT0}, {WS_TS}")
            a(f"buffer_store_dword v{vTS}, v{vOMa}, {srd(SWS)}, s{sT0} offen")
        a("s_endpgm")

    def build(self):
        a = self.a
        self.common()
        st = a.state()
        saved = {}
        for role in ("att", "ffn"):
            self.role, self.pitch = role, 3584 if role == "ffn" else 3072
            if role == "ffn":
                a.label("L_ffn")
                a.set_state(st)
            self.early(role)
            saved[role] = (a.state(), self.s0, self.ts_pend)
            self.ts_pend = None
            if role == "att":
                a.raw("s_branch L_att_rest")
        self.early_len = len(a.out)
        for role in ("ffn", "att"):
            self.role, self.pitch = role, 3584 if role == "ffn" else 3072
            self.bpf_done = 0
            if role == "att":
                a.raw(".p2align 7")
                a.label("L_att_rest")
            state, self.s0, self.ts_pend = saved[role]
            a.set_state(state)
            self.setup(role)
            self.main_loop(role)
            self.ffn_epilogue() if role == "ffn" else self.att_epilogue()
            assert self.bpf_done in (0, 14), self.bpf_done
            self.phase2()
        a.label("L_exit")
        head = open("cdna_kernels/" + KNAME[:-7] + ".s.ref").read().split("; Override")[0]
        return (head + "; @launch grid=(256,1,1) block=(256,1,1) lds=163840\n"
                + '.amdgcn_target "amdgcn-amd-amdhsa--gfx950"\n.text\n'
                + f".globl {KNAME}\n.p2align 8\n.type {KNAME},@function\n{KNAME}:\n"
                + a.text() + "  s_endpgm\n"
                + f'.section .rodata,"a"\n.p2align 6\n.amdhsa_kernel {KNAME}\n'
                + "  .amdhsa_next_free_vgpr 512\n  .amdhsa_next_free_sgpr 102\n  .amdhsa_accum_offset 256\n"
                + "  .amdhsa_group_segment_fixed_size 0\n  .amdhsa_kernarg_size 80\n  .amdhsa_user_sgpr_count 2\n"
                + "  .amdhsa_user_sgpr_kernarg_segment_ptr 1\n  .amdhsa_system_sgpr_workgroup_id_x 1\n"
                + "  .amdhsa_float_denorm_mode_32 3\n.end_amdhsa_kernel\n")


if __name__ == "__main__":
    out = sys.argv[1]
    diag = len(sys.argv) > 2 and sys.argv[2] == "diag"
    cfg = json.loads(sys.argv[3]) if len(sys.argv) > 3 else None
    g = Gen2(diag, cfg)
    txt = g.build()
    open(out, "w").write(txt)
    if diag:
        json.dump(g.tsn, open(out + ".json", "w"))
    print("instructions", len(g.a.out), "nop states", g.a.nops)
```

```python
import sys, json
import gen_kernel as G0
G0.SWO, G0.SW, G0.SG, G0.SDBG, G0.SW2, G0.SWS, G0.SOUT = 8, 12, 16, 20, 24, 28, 32
from gen_kernel import *

SWA = 88
sK, sROT, sPO, sNO2, sEX, cD0 = 47, 48, 54, 55, 84, 86
sKS1, sKS2 = 49, 87
sKV, sKS, sFL, sPH, sPG, sJ, sOM, sO0, sO1, sAP, sKV2 = 3, 92, 93, 94, 95, 96, 97, 98, 99, 100, 101
vPX, vPW, vPB, vE, vD = 248, 249, 250, 251, 252
vOMa, vOMw, vOMr, vOMv, vRa, vOa, vAP, vT16 = range(206, 214)
e0, e1, e2, e2x, e3, e4, e5, e6, e7, f0, f1, f3 = range(116, 128)
ONES = 4
KVP = 768


def lanes(n):
    if n == 64:
        return ["s_mov_b64 exec, -1"]
    if n < 32:
        return [f"s_mov_b64 exec, {(1 << n) - 1:#x}"]
    return ["s_mov_b32 exec_lo, -1", f"s_mov_b32 exec_hi, {(1 << (n - 32)) - 1:#x}"]


class Gen2(Gen):
    def __init__(self, diag=False, cfg=None):
        base = dict(cap=4, depth=8, opf=1, cpf=1, pipe=1, opoll=2, wopf="x", krot=6, brot=1, rev=1, xpar=1, mpf="p", tlb="x",
                    st6=[0, 1, 2, 3, 4], st7=[5, 6], st7p=[7, 8], mv7=0,
                    fd=[[9 + n] for n in range(14)],
                    fm=[[], [0], [1, 2], [3, 4], [5, 6], [7, 8], [9, 10], [], [], [11], [12], [13], [14], []],
                    fpre=31,
                    kd=[[9], [10], [11], [12], [], [], [], [], []],
                    km=[[], [], [], [0, 1], [], [], [], [], [2, 3]],
                    qd=[[13, 14], [15, 16], [17], []],
                    qm=[[4, 5, 6], [7, 8], [9, 10], [11, 12]],
                    n1=[18, 19, 20, 21, 22, 23],
                    sd={"0": [24], "2": [25], "4": [26], "6": [27], "8": [28], "10": [29], "12": [30], "14": [31]},
                    sm={"1": [13], "2": [14], "3": [15], "4": [16], "5": [17]})
        base.update(cfg or {})
        super().__init__(diag, base)
        self.a.pipe = bool(self.cfg["pipe"])
        self.pre = []

    def ts0(self, name, reg):
        if self.diag:
            for r in self.tsn:
                self.tsn[r].append(name)
            self.pre.append((len(self.tsn["ffn"]) - 1, reg))
            self.a(f"s_memtime {sp(reg)}")

    def emit(self, items, tag=None):
        for x in items:
            if x == []:
                continue
            if callable(x):
                x()
            elif isinstance(x, tuple):
                self.a(*x)
            else:
                self.a(x, tag)

    def common(self):
        a = self.a
        a("s_cmpk_ge_u32 s2, 256")
        a("s_cbranch_scc1 L_exit")
        if self.diag:
            a(f"s_memrealtime {sp(sTS + 2)}")
            a(f"s_memtime {sp(sTS + 4)}")
        a("s_load_dwordx16 s[4:19], s[0:1], 0")
        a("s_load_dwordx4 s[20:23], s[0:1], 64")
        self.emit([
            "v_lshrrev_b32 v4, 6, v0",
            f"v_and_b32 v{vL}, 63, v0",
            f"v_readfirstlane_b32 s{sW}, v4",
            f"v_lshrrev_b32 v4, 3, v{vL}",
            f"v_lshrrev_b32 v5, 4, v{vL}",
            f"v_and_b32 v6, 7, v{vL}",
            f"s_and_b32 s{sT0}, s2, 1",
            f"s_lshr_b32 s{sT1}, s2, 5",
            f"s_lshl3_add_u32 s{sRB}, s{sT0}, s{sT1}",
            "v_xor_b32 v7, v5, v6",
            "v_lshlrev_b32 v7, 4, v7",
            f"s_bfe_u32 s{sT0}, s2, 0x20003",
            f"s_lshl1_add_u32 s{sK}, s{sT0}, s{sT1}",
            f"s_sub_u32 s{sK}, 0, s{sK}" if self.cfg["rev"] else [],
            f"s_and_b32 s{sK}, s{sK}, {self.cfg['krot']}"] + ([
            f"s_lshr_b32 s{sT2}, s2, 1",
            f"s_xor_b32 s{sT2}, s{sT2}, s2",
            f"s_and_b32 s{sT2}, s{sT2}, 1",
            f"s_add_u32 s{sK}, s{sK}, s{sT2}"] if self.cfg["xpar"] else []) + [
            f"v_lshl_add_u32 v{vDX}, v4, 10, v7",
            f"v_xor_b32 v{vDX + 1}, 64, v{vDX}",
            f"s_lshl2_add_u32 s{sOX}, s{sRB}, s{sW}",
            f"s_lshl_b32 s{sOX}, s{sOX}, 8",
            f"s_add_u32 s{sOX}, s{sOX}, s{sK}",
            f"s_lshl_b32 s{sOX}, s{sOX}, 7",
            f"v_add_u32 v{vDX + 1}, 7168, v{vDX + 1}",
            f"v_add_u32 v{vDX + 2}, 14336, v{vDX}",
            f"s_lshl_b32 s{sMX}, s{sW}, 12",
            f"s_and_b32 s{sT0}, s2, 6",
            f"s_bfe_u32 s{sCOL}, s2, 0x10004",
            f"v_add_u32 v{vDX + 3}, 14336, v{vDX + 1}",
            f"v_lshlrev_b32 v{vL16}, 4, v{vL}",
            f"s_add_u32 s{sCOL}, s{sCOL}, s{sT0}",
            f"s_lshl2_add_u32 s{sOW}, s{sK}, s{sW}",
            "s_bitcmp1_b32 s2, 3",
            "s_cbranch_scc1 L_att"])

    def code_prefetch(self, role):
        pc, end = f"L_pc_{role}", "L_att_rest" if role == "ffn" else "L_exit"
        first = f"L_{role}_rest"
        self.emit([f"s_getpc_b64 {sp(sT0)}", lambda: self.a.label(pc),
                   f"s_lshr_b32 s{sT3}, s2, 4",
                   f"s_lshl_b32 s{sT3}, s{sT3}, 11",
                   f"s_add_u32 s{sT3}, s{sT3}, {first}-{pc}",
                   "v_lshrrev_b32 v10, 4, v0",
                   "v_and_b32 v11, 3, v0",
                   "v_add_u32 v10, v10, v11",
                   f"v_lshl_add_u32 v10, v10, 7, s{sT3}",
                   f"v_min_u32 v10, {end}-{pc}, v10",
                   f"v_mov_b32 v11, s{sT1}",
                   f"v_add_co_u32 v10, vcc, s{sT0}, v10",
                   "v_addc_co_u32 v11, vcc, 0, v11, vcc",
                   "s_mov_b64 exec, 0xf",
                   (f"global_load_dword v{vD}, v[10:11], off", "PFc"),
                   "s_mov_b64 exec, -1"])

    def stage_items(self, role, s):
        sw = SW if role == "ffn" else SWA
        base = STAGE[s % 3]
        xs = [f"buffer_load_dwordx4 v{vDX + i}, {srd(SX)}, s{sOX} offen offset:{1024 * i} lds" for i in range(4)]
        n = 7 if role == "ffn" else 6
        ws = [f"buffer_load_dwordx4 v{vDW + m}, {srd(sw)}, s{sOW} offen offset:{1024 * (m % 4)} lds" for m in range(n)]
        step = [f"s_cmp_eq_u32 s{sK}, {7 - s}", f"s_cselect_b32 s{sKS1}, -7, 1"]
        slots = [[f"s_add_u32 m0, s{sMX}, {base}", xs[0]], [xs[1]] + step, [xs[2], f"s_lshl_b32 s{sKS2}, s{sKS1}, 7"],
                 [xs[3], f"s_add_u32 s{sOX}, s{sOX}, s{sKS2}"]]
        for m, t in enumerate(ws):
            pre = [f"s_add_u32 m0, s{sMW}, {base + 16384 + 1024 * m}"] if m in (0, 4) else []
            post = []
            if m == 1:
                post = [f"s_mul_i32 s{sKS1}, s{sKS1}, {64 * self.pitch}"]
            if m == n - 1:
                post = [f"s_add_u32 s{sOW}, s{sOW}, s{sKS1}"]
            slots.append(pre + [t] + post)
        return [[(x, f"S{s}") for x in sl] for sl in slots]

    def pf_b(self, where):
        if str(self.cfg["wopf"]) == str(where):
            return lanes(32) + [(f"buffer_load_dword v{vD + 2}, v{vPB}, {srd(SWO)}, s{sPO} offen", "PF")]
        return []

    def pf_chip(self, where):
        out = []
        if self.cfg["mpf"] == where:
            out += [f"s_lshl2_add_u32 s{sT2}, s2, s{sW}", f"s_mul_i32 s{sT3}, s{sT2}, {14 * 128}",
                    f"s_lshl_b32 s{sT2}, s{sT2}, 9", f"v_lshlrev_b32 v9, 7, v{vL}"] + lanes(14)
            out += [(f"buffer_load_dword v{vD + 1}, v9, {srd(SW2)}, s{sT3} offen", "PF")] + lanes(4)
            out += [(f"buffer_load_dword v{vD + 2}, v9, {srd(SWO)}, s{sT2} offen", "PF")]
        if self.cfg["tlb"] == where:
            out += ["s_mov_b64 exec, -1", f"s_lshl2_add_u32 s{sT2}, s2, s{sW}", f"s_lshl_b32 s{sT2}, s{sT2}, 7",
                    f"v_lshlrev_b32 v9, 21, v{vL}", f"s_mov_b32 s{SOUT + 2}, {2048 * 1024}",
                    f"s_mov_b32 s{SOUT + 3}, 0x20000"] + lanes(6)
            out += [(f"buffer_load_dword v{vPX}, v9, {srd(SWS)}, s{sT2} offen", "PF"), f"v_lshlrev_b32 v9, 20, v{vL}"]
            out += lanes(2) + [(f"buffer_load_dword v{vPW}, v9, {srd(SOUT)}, s{sT2} offen", "PF")]
        return out + ["s_mov_b64 exec, -1"] * bool(out)

    def early(self, role):
        a = self.a
        ffn = role == "ffn"
        sw, pitch = (SW, 3584) if ffn else (SWA, 3072)
        v8 = ["v_lshlrev_b32 v8, 2, v5", "v_and_b32 v8, 4, v8", "v_xor_b32 v8, v8, v6", "v_lshlrev_b32 v8, 4, v8"]
        if ffn:
            a(f"v_mul_u32_u24 v9, 9363, v{vL}")
            a(f"s_movk_i32 s{sT1}, 3136")
            a(f"v_add_u32 v11, 4096, v{vL16}")
        else:
            self.emit(v8 + [f"v_mul_u32_u24 v9, 3072, v4", f"v_add_u32 v9, v9, v8"])
        sal = [f"s_mul_i32 s{sOW}, s{sOW}, {16 * pitch}",
               f"s_mul_i32 s{sT0}, s{sCOL}, {448 if ffn else 128}",
               f"s_add_u32 s{sOW}, s{sOW}, s{sT0}",
               f"s_mul_i32 s{sMW}, s{sW}, {7168 if ffn else 6144}"]
        for m in range(7 if ffn else 6):
            if ffn:
                if m:
                    a(f"v_add_u32 v9, {64 * 9363}, v9")
                a(f"v_lshrrev_b32 v10, 18, v9")
                a(f"v_mad_u32_u24 v{vDW + m}, v10, s{sT1}, v{11 if m >= 4 else vL16}")
            else:
                off = (m & 1) * 8 * 3072 + (1024, 2048, 0)[m >> 1] - 1024 * (m % 4)
                a(f"v_add_u32 v{vDW + m}, {off}, v9")
            if sal:
                a(sal.pop(0))
        if self.diag:
            self.tsn[role].append("addr")
            a(f"s_memtime {sp(96)}")
        a.wait_all(vm=False)
        self.ts("karg")
        if ffn:
            a(f"s_mov_b64 {sp(SW2)}, s[14:15]")
        else:
            a(f"s_mov_b64 {sp(SWA)}, s[6:7]")
        for r, n in ((SX, 2048 * 1024), (sw, 512 * pitch)):
            a(f"s_mov_b32 s{r + 2}, {n}")
            a(f"s_mov_b32 s{r + 3}, 0x20000")
        for sl in self.stage_items(role, 0):
            self.emit(sl)
        if self.diag:
            a(f"v_writelane_b32 v{vTS}, s96, 0")
        self.ts("s0iss")
        if self.cfg["cpf"]:
            self.code_prefetch(role)
        if ffn:
            self.emit(v8)

    def setup(self, role):
        a = self.a
        ffn = role == "ffn"
        if not ffn:
            a(f"s_mov_b64 {sp(SW2)}, s[14:15]")
        self.emit([
            f"s_mov_b64 {sp(SOUT)}, s[18:19]",
            f"s_mov_b64 {sp(SWS)}, s[22:23]",
            f"s_lshr_b32 s{sRH}, s{sW}, 1",
            f"s_and_b32 s{sCH}, s{sW}, 1",
            f"v_and_b32 v10, 31, v{vL}",
            f"v_lshrrev_b32 v11, 5, v{vL}",
            f"v_bfe_u32 v12, v{vL}, 1, 3",
            "v_xor_b32 v12, v12, v11",
            "v_lshlrev_b32 v12, 4, v12",
            "v_lshl_add_u32 v12, v10, 7, v12",
            f"s_add_u32 s{sT0}, s{sMX}, {STAGE[0]}",
            f"s_xor_b32 s{sT1}, s{sMX}, 4096",
            f"s_add_u32 s{sT1}, s{sT1}, {STAGE[0]}"])
        for t in range(4):
            a(f"v_xor_b32 v13, {32 * t}, v12")
            a(f"v_add_u32 v{vXA + t}, s{sT0}, v13")
            a(f"v_add_u32 v{vXB + t}, s{sT1}, v13")
        self.emit([
            f"v_bfe_u32 v13, v{vL}, 2, 2",
            f"v_bfe_u32 v14, v{vL}, 4, 1",
            "v_lshlrev_b32 v14, 5, v14",
            f"v_and_b32 v15, 3, v{vL}",
            "v_lshl_add_u32 v14, v15, 3, v14",
            "v_lshl_add_u32 v15, v11, 3, v13"])
        if ffn:
            self.emit([
                "v_mul_u32_u24 v15, 448, v15",
                "v_add_u32 v15, v15, v14",
                f"v_add_u32 v{vW3}, {STAGE[0] + 16384 + 192}, v15",
                f"s_lshl_b32 s{sT0}, s{sCH}, 8",
                f"s_add_u32 s{sT0}, s{sT0}, {STAGE[0] + 16384}",
                f"v_add_u32 v{vW}, s{sT0}, v15"])
        else:
            self.emit([
                "v_lshl_add_u32 v15, v15, 7, v14",
                "v_lshrrev_b32 v9, 1, v13",
                f"v_xor_b32 v9, s{sCH}, v9",
                "v_lshl_add_u32 v15, v9, 6, v15",
                f"v_add_u32 v{vW}, {STAGE[0] + 16384}, v15",
                f"v_lshrrev_b32 v9, 2, v{vL}",
                "v_xor_b32 v9, v9, v5",
                "v_and_b32 v9, 1, v9",
                "v_lshlrev_b32 v9, 10, v9",
                "v_lshl_add_u32 v9, v11, 4, v9",
                f"v_add_u32 v{vW3}, {L_T0}, v9"])
            for r in range(TMP, TMP + 4):
                a(f"v_mov_b32 v{r}, 0")
            a(f"v_add_u32 v9, {L_T0 + 1024}, v{vL16}")
            a(f"ds_write_b128 v9, {vr(TMP)}", "zero")
        for s, n in ((SWS, WS_BYTES), (SW2, 1792 * 1024), (SWO, 512 * 1024), (SDBG, 256), (SG, 1024)):
            a(f"s_mov_b32 s{s + 2}, {n}")
            a(f"s_mov_b32 s{s + 3}, 0x20000")
        self.emit([
            f"v_mov_b32 v{vZ}, 0",
            f"v_lshlrev_b32 v9, 7, v6",
            f"v_lshl_add_u32 v{vPB}, v4, 15, v9",
            f"s_bfe_u32 s{sT0}, s2, 0x30003",
            f"s_lshl2_add_u32 s{sT0}, s{sT0}, s{sW}",
            f"s_lshr_b32 s{sT1}, s2, 6",
            f"s_lshl_b32 s{sPO}, s{sT1}, 7",
            f"s_add_u32 s{sPO}, s{sPO}, s{sT0}",
            f"s_lshl_b32 s{sPO}, s{sPO}, 10"])
        if ffn:
            self.emit([f"s_or_b32 s{sT0}, s2, s{sW}", f"s_cmp_eq_u32 s{sT0}, 0",
                       f"s_cselect_b32 s{sEX}, 1, 0", f"s_mov_b32 s{sEX + 1}, 0"])
        self.ts("setup")
        if not ffn:
            a(f"s_lshl_b32 s{sT0}, s{sK}, 7")
            a(f"v_add_u32 v9, s{sT0}, v{vL16}")
            a(f"v_and_b32 v9, 1023, v9")
            a(f"s_mov_b32 m0, {L_T0}")
            a(f"buffer_load_dwordx4 v9, {srd(SG)}, 0 offen lds", "S0")
        self.emit(self.pf_chip("0"))
        for x in self.stage_items(role, 1):
            self.emit(x)
        self.emit(self.pf_chip("p"))
        tail = self.pf_b("p")
        if ffn:
            tail += [f"s_mov_b64 exec, {sp(sEX)}", (f"buffer_load_dword v{vE}, v{vZ}, {srd(SWS)}, 0 offen sc1", "E")]
        self.emit(tail + ["s_mov_b64 exec, -1"] * bool(tail))

    def fillers(self, role):
        f = []
        for c, val in ((cM16, 0xFFFF0000), (cNL2E, 0xBFB8AA3B), (cONE, 0x3F800000), (cEPS, 0x358637BD),
                       (cL2E, 0x3FB8AA3B)):
            f += [f"s_mov_b32 s{c}, {val:#x}", f"s_mov_b32 s{c + 1}, {val:#x}"]
        f += [f"s_mov_b32 s{cD0}, 0x3f80",
              f"s_mov_b32 s{sSPIN}, {self.cfg['spin']}",
              f"s_mov_b32 s{SOUT + 2}, {2048 * 1024}",
              f"s_mov_b32 s{SOUT + 3}, 0x20000",
              f"s_and_b32 s{sRT}, s2, 7",
              f"s_lshr_b32 s{sT0}, s2, 6",
              f"s_lshl2_add_u32 s{sRT}, s{sRT}, s{sT0}",
              f"s_bfe_u32 s{sCC}, s2, 0x30003",
              f"v_lshl_add_u32 v{vDB}, v4, 10, v8",
              f"v_add_u32 v{vDB + 1}, 7168, v{vDB}",
              f"s_mul_i32 s{sOB}, s{sW}, {448 * 1024}",
              f"s_lshl_b32 s{sT0}, s{sCC}, 7",
              f"s_add_u32 s{sOB}, s{sOB}, s{sT0}",
              f"s_add_u32 s{sROT}, s{sRT}, s{sCC}",
              f"s_mul_i32 s{sROT}, s{sROT}, {-1 if self.cfg['rev'] else 1}",
              f"s_and_b32 s{sROT}, s{sROT}, {3 if self.cfg['brot'] else 0}",
              f"s_mul_i32 s{sT0}, s{sROT}, {7 * 16 * K}",
              f"s_add_u32 s{sOB}, s{sOB}, s{sT0}",
              f"s_lshl_b32 s{sBA}, s{sW}, 14",
              f"s_mul_i32 s{sBB}, s{sW}, {10 * K}",
              f"s_add_u32 s{sBB}, s{sBB}, {REGB}",
              "v_lshl_add_u32 v15, v11, 2, v13",
              "v_lshl_add_u32 v15, v15, 7, v14",
              "v_lshrrev_b32 v9, 1, v13",
              "v_lshl_add_u32 v15, v9, 6, v15",
              f"v_add_u32 v{vTA}, s{sBA}, v15",
              f"v_add_u32 v{vTB}, s{sBB}, v15",
              "v_xor_b32 v15, 64, v15",
              f"v_add_u32 v{vTA + 1}, s{sBA}, v15",
              f"v_add_u32 v{vTB + 1}, s{sBB}, v15",
              f"s_lshl1_add_u32 s{sT0}, s{sRB}, s{sRH}",
              f"s_lshl3_add_u32 s{sT0}, s{sT0}, s{sCOL}",
              f"s_lshl1_add_u32 s{sT0}, s{sT0}, s{sCH}",
              f"s_lshl_b32 s{sT0}, s{sT0}, 7",
              f"s_add_u32 s{sFL}, s{sT0}, {WS_HF if role == 'ffn' else WS_OF}",
              f"s_lshl2_add_u32 s{sT1}, s{sRB}, s{sW}",
              f"s_xor_b32 s{sT2}, s{sT1}, 1",
              f"s_mul_i32 s{sT1}, s{sT1}, {144 * K}",
              f"s_mul_i32 s{sT2}, s{sT2}, {144 * K}"]
        if role == "ffn":
            f += [f"s_mul_i32 s{sT0}, s{sCOL}, {14 * K}",
                  f"s_add_u32 s{sT0}, s{sT0}, {WS_A}",
                  f"s_add_u32 s{sH3}, s{sT1}, s{sT0}",
                  f"s_lshl_b32 s{sT3}, s{sCH}, 13",
                  f"s_add_u32 s{sHA}, s{sH3}, s{sT3}",
                  f"s_add_u32 s{sHB}, s{sT2}, s{sT0}",
                  f"s_add_u32 s{sHB}, s{sHB}, s{sT3}",
                  f"s_add_u32 s{sH3}, s{sH3}, {6 * K}"]
        else:
            f += [f"s_lshl1_add_u32 s{sT0}, s{sCOL}, s{sCH}",
                  f"s_lshl_b32 s{sT3}, s{sT0}, 11",
                  f"s_add_u32 s{sT3}, s{sT3}, {WS_A + 112 * K}",
                  f"s_add_u32 s{sHA}, s{sT1}, s{sT3}",
                  f"s_add_u32 s{sHB}, s{sT2}, s{sT3}",
                  f"s_lshl_b32 s{sT0}, s{sT0}, 13",
                  f"s_lshl1_add_u32 s{sT1}, s{sRB}, s{sRH}",
                  f"s_lshl_b32 s{sT1}, s{sT1}, 8",
                  f"s_add_u32 s{sT0}, s{sT0}, s{sT1}",
                  f"s_add_u32 s{sH3}, s{sT0}, {WS_OMG}",
                  f"v_and_b32 v12, 15, v{vL}",
                  "v_lshlrev_b32 v13, 8, v11",
                  "v_lshl_add_u32 v9, v12, 4, v13",
                  f"s_lshl_b32 s{sT0}, s{sW}, 11",
                  f"s_add_u32 s{sT0}, s{sT0}, {L_SCR}",
                  f"v_add_u32 v13, s{sT0}, v9",
                  f"s_lshl_b32 s{sT0}, s{sW}, 6",
                  f"s_add_u32 s{sT0}, s{sT0}, {L_T1}",
                  f"v_lshl_add_u32 v14, v11, 4, s{sT0}",
                  f"v_cndmask_b32 v{e0}, v13, v14, {sp(cM16)}",
                  "v_add_u32 v13, 1024, v13",
                  "v_add_u32 v14, 32, v14",
                  f"v_cndmask_b32 v{e1}, v14, v13, {sp(cM16)}",
                  f"s_lshl_b32 s{sT0}, s{sW}, 7",
                  f"s_add_u32 s{sT0}, s{sT0}, {L_T1 + 1024}",
                  f"v_lshl_add_u32 v{e2}, v10, 2, s{sT0}",
                  f"v_xor_b32 v{e2x}, 128, v{e2}",
                  f"s_lshl1_add_u32 s{sT1}, s{sCH}, s{sRH}",
                  f"s_lshl_b32 s{sT0}, s{sT1}, 10",
                  f"s_add_u32 s{sT0}, s{sT0}, {L_SCR}",
                  f"v_add_u32 v{e3}, s{sT0}, v{vL16}",
                  f"s_lshl_b32 s{sT0}, s{sT1}, 5",
                  f"s_add_u32 s{sT0}, s{sT0}, {L_T1}",
                  f"v_bfe_u32 v15, v{vL}, 3, 1",
                  "v_lshlrev_b32 v13, 9, v15",
                  "v_lshl_add_u32 v13, v6, 2, v13",
                  f"v_add_u32 v{e4}, s{sT0}, v13",
                  f"s_lshl2_add_u32 s{sT2}, s{sCOL}, s{sT1}",
                  f"s_mul_i32 s{sKV}, s{sT2}, {16 * KVP}",
                  f"s_add_u32 s{sKV}, s{sKV}, {WS_KV}",
                  f"s_add_u32 s{sKV2}, s{sKV}, {8 * KVP}",
                  f"s_mul_i32 s{sKS}, s{sRB}, {KVP}",
                  f"s_add_u32 s{sKS}, s{sKS}, s{sKV}",
                  f"v_mul_u32_u24 v{e6}, 12, v{vL}",
                  f"v_add_u32 v{e7}, {4 * KVP}, v{e6}",
                  f"s_lshl_b32 s{sT3}, s{sRH}, 8",
                  f"s_add_u32 s{sT3}, s{sT3}, {L_T1 + 1024}",
                  f"v_lshl_add_u32 v{e5}, v{vL}, 2, s{sT3}",
                  f"s_mul_i32 s{sT0}, s{sT1}, 576",
                  f"s_add_u32 s{sT0}, s{sT0}, {L_T1 + 1536}",
                  "v_lshlrev_b32 v13, 4, v10",
                  "v_lshl_add_u32 v13, v11, 3, v13",
                  f"v_add_u32 v{f0}, s{sT0}, v13",
                  f"v_bfe_u32 v13, v{vL}, 2, 1",
                  "v_lshlrev_b32 v13, 4, v13",
                  "v_lshl_add_u32 v13, v15, 3, v13",
                  f"v_and_b32 v14, 3, v{vL}",
                  "v_lshl_add_u32 v13, v14, 1, v13",
                  f"s_add_u32 s{sT0}, s{sT0}, 512",
                  f"v_add_u32 v{f1}, s{sT0}, v13",
                  f"s_mul_i32 s{sT0}, s{sCH}, 1152",
                  f"s_add_u32 s{sT0}, s{sT0}, {L_T1 + 1536}",
                  "v_lshlrev_b32 v14, 4, v11",
                  "v_add_u32 v14, 512, v14",
                  f"v_cndmask_b32 v13, v9, v14, {sp(cM16)}",
                  f"v_add_u32 v{f3}, s{sT0}, v13"]
        f += [f"v_and_b32 v{vPA}, 3, v{vL}",
              f"v_lshlrev_b32 v{vPA}, 7, v{vPA}",
              f"s_lshl2_add_u32 s{sT0}, s{sRT}, s{sW}",
              f"s_lshl_b32 s{sT0}, s{sT0}, 9",
              f"s_add_u32 s{sPH}, s{sT0}, {WS_HF}",
              f"s_add_u32 s{sPG}, s{sT0}, {WS_OF}",
              f"s_mul_i32 s{sA0}, s{sRT}, {288 * K}",
              f"s_mul_i32 s{sT0}, s{sW}, {28 * K}",
              f"s_add_u32 s{sA0}, s{sA0}, s{sT0}",
              f"s_add_u32 s{sA0}, s{sA0}, {WS_A}",
              f"s_mul_i32 s{sT1}, s{sW}, {20 * K}",
              f"s_sub_u32 s{sJ}, {112 * K}, s{sT1}",
              f"s_lshl_b32 s{sT0}, s{sCC}, 7",
              f"s_add_u32 s{sAP}, s{sA0}, s{sT0}",
              f"s_add_u32 s{sAP}, s{sAP}, s{sJ}",
              f"s_mul_i32 s{sT1}, s{sROT}, {7 * K}",
              f"s_add_u32 s{sA0}, s{sA0}, s{sT1}",
              f"s_add_u32 s{sA1}, s{sA0}, {144 * K}",
              f"s_add_u32 s{sT1}, s{sROT}, 3",
              f"s_and_b32 s{sT1}, s{sT1}, 3",
              f"s_mul_i32 s{sT1}, s{sT1}, {7 * K}",
              f"s_sub_u32 s{sJ}, s{sJ}, s{sT1}",
              f"s_sub_u32 s{sJ}, s{sJ}, {4 * K}",
              f"s_lshl_b32 s{sO0}, s{sRT}, 16",
              f"s_add_u32 s{sO0}, s{sO0}, s{sT0}",
              f"s_add_u32 s{sO0}, s{sO0}, s{sBA}",
              f"s_add_u32 s{sO1}, s{sO0}, 8192",
              f"s_lshl_b32 s{sT0}, s{sW}, 15",
              f"s_lshl_b32 s{sT2}, s{sRT}, 8",
              f"s_add_u32 s{sT0}, s{sT0}, s{sT2}",
              f"s_add_u32 s{sOM}, s{sT0}, {WS_OMG}",
              f"s_lshl_b32 s{sT0}, s{sW}, 8",
              f"s_add_u32 s{sT0}, s{sT0}, {L_T0}",
              f"v_lshlrev_b32 v{vOMa}, 2, v{vL}",
              f"v_add_u32 v{vOMw}, s{sT0}, v{vOMa}",
              f"v_lshl_add_u32 v{vOMr}, v11, 4, s{sT0}",
              f"s_lshl_b32 s{sT0}, s{sRH}, 13",
              f"s_lshl_b32 s{sT1}, s{sCH}, 11",
              f"s_add_u32 s{sT0}, s{sT0}, s{sT1}",
              f"v_add_u32 v{vRa}, s{sT0}, v{vL16}",
              "v_and_b32 v9, 1, v4",
              "v_lshl_add_u32 v9, v9, 2, v5",
              "v_lshlrev_b32 v13, 3, v6",
              f"v_lshl_add_u32 v{vOa}, v9, 10, v13",
              f"v_and_b32 v9, 1, v{vL}",
              f"v_mul_u32_u24 v9, {144 * K}, v9",
              f"v_lshrrev_b32 v13, 1, v{vL}",
              f"v_lshl_add_u32 v{vAP}, v13, 10, v9"]
        if role == "att":
            f += [f"v_mov_b32 v{ONES + i}, 0x3f803f80" for i in range(4)]
        return f

    def b_pair(self, b):
        assert b == self.nb and (b < NB_REG or b - NB_REG < self.nm), (b, self.nb, self.nm)
        self.nb += 1
        pre = [lambda: self.a.wait_lg(f"M{b - NB_REG}")] if b >= NB_REG else []
        s0, s1 = [[(x, f"B{b}") for x in sl] for sl in self.b_dma(b)]
        if b in (6, 13, 20):
            s0 += [f"s_cmp_eq_u32 s{sROT}, {3 - b // 7}", f"s_cselect_b32 s{sT3}, {28 * 16 * K}, 0"]
            s1 += [f"s_sub_u32 s{sOB}, s{sOB}, s{sT3}"]
        return [pre + s0, s1]

    def move_pair(self, b):
        assert b == self.nm and b < self.nb, (b, self.nb, self.nm)
        self.nm += 1
        r = [(x, f"M{b}") for x in self.b_reads(b, lambda o: ar(8 * b + o, 2))]
        return [[lambda: self.a.wait_vm(f"B{b}")] + r[:2], r[2:]]

    def stage(self, role, s):
        a = self.a
        plan = {(t, g): [] for t in range(4) for g in range(7)}
        for t in range(3):
            for g, grp in enumerate(self.reads(role, t + 1)):
                plan[t, g] += grp
        plan[3, 1] += [lambda: a.wait_vm(f"S{s + 1}"), "s_barrier"]
        if s < 7:
            for g, grp in enumerate(self.reads(role, 0)):
                plan[3, g + 1] += grp
        pos = [(t, g) for t in range(3) for g in (1, 3, 5, 6)] + [(3, g) for g in range(2, 6)]
        spread = lambda sl, n: [sl[i * len(sl) // n] if (i + 1) * len(sl) // n > i * len(sl) // n else [] for i in range(n)]
        pairs = lambda bs: [sl for b in bs for sl in self.b_pair(b)]
        if s < 6:
            slots = self.stage_items(role, s + 2)
        elif s == 6:
            slots = spread(pairs(self.cfg["st6"]), 16)
        else:
            slots = spread(pairs(self.cfg["st7"]), 12) + pairs(self.cfg["st7p"])
        assert len(slots) <= len(pos)
        for p, sl in zip(pos, slots):
            pre = [x for x in sl if isinstance(x, tuple) and x[0].startswith("s_add_u32 m0")]
            at = 2 if p == (3, 1) else 0
            plan[p][at:at] = pre
            plan[p] += [x for x in sl if x not in pre]
        if s < 7:
            d = DELTA[s % 3] & 0xFFFFFFFF
            add = lambda r: f"v_add_u32 v{r}, {d:#x}, v{r}"
            plan[0, 0] += [add(vXA)]
            plan[0, 2] += [add(vXB)]
            plan[0, 4] += [add(vXA + 1), add(vXB + 1)]
            plan[1, 4] += [add(vXA + 2), add(vXB + 2)]
            plan[2, 4] += [add(vXA + 3), add(vXB + 3)]
            plan[2, 5] += [add(vW)]
            plan[2, 6] += [add(vW3) if role == "ffn" else f"v_add_u32 v{vW3}, 128, v{vW3}"]
        pf = self.pf_b(s)
        if pf:
            plan[3, 6 if role == "ffn" else 5] += pf + ["s_mov_b64 exec, -1"]
        if s == 2 and role == "ffn":
            plan[1, 0] += [f"v_add_u32 v{vE}, 1, v{vE}", f"v_max_u32 v{vE}, 1, v{vE}"]
            plan[1, 2] += [f"s_mov_b64 exec, {sp(sEX)}",
                           (f"buffer_store_dword v{vE}, v{vZ}, {srd(SDBG)}, 0 offen sc1", "E"),
                           (f"buffer_store_dword v{vE}, v{vZ}, {srd(SWS)}, 0 offen sc1", "E"),
                           "s_mov_b64 exec, -1"]
        if s == 6:
            plan[0, 0] += [(f"buffer_load_dword v{vNO}, v{vZ}, {srd(SDBG)}, 0 offen sc1", "nonce")]
        if s == 7:
            mv = [x for b in range(self.cfg.get("mv7", 6)) for x in self.move_pair(b)]
            mpos = [(t, g) for t in range(3) for g in (5, 6)][self.cfg.get("mv7skip", 0):] + [(3, g) for g in range(7)]
            while mv:
                for p in mpos:
                    if mv:
                        plan[p] += mv.pop(0)
                mpos = mpos[-7:]
        for t in range(4):
            a.lg = self.retag(self.retag(a.lg, "r0", "o0"), "r1", "o1")
            if t == 3:
                a.wait_lg("o0", "o1")
            for g, m in enumerate(self.mfmas(role, t)):
                if g == 0:
                    a.wait_lg("o0")
                if g == 4:
                    a.wait_lg("o1")
                if s == 0 and t == 0:
                    m = m.rsplit(",", 1)[0] + ", 0"
                a(m)
                self.emit(plan[t, g])
                cap = self.cfg["cap"] - (2 if role == "att" and g == 6 else 0)
                room = cap - len([x for x in plan[t, g] if not callable(x)])
                while room > 0 and self.fill and (s or t):
                    a(self.fill.pop(0))
                    room -= 1

    def main_loop(self, role):
        a = self.a
        self.fill = self.fillers(role)
        self.nb = self.nm = 0
        for _ in range(self.cfg.get("nsetup", 0)):
            a(self.fill.pop(0))
        self.ts("issued")
        a.wait_lg("zero")
        a.wait_vm("S0")
        a("s_barrier")
        self.ts("s0rdy")
        for grp in self.reads(role, 0):
            self.emit(grp)
        for s in range(8):
            if s == 6:
                assert not self.fill, len(self.fill)
            self.stage(role, s)
            if s in self.cfg.get("tss", (1, 3, 5)):
                self.ts(f"st{s}")
        self.ts("loopend")

    def spin(self, check, reload, branch_ok, branch_retry):
        a = self.a
        done, retry = self.lab("ok"), self.lab("retry")
        for x in check:
            a(x)
        a.raw(f"{branch_ok} {done}")
        a.label(retry)
        a.raw(f"s_sub_u32 s{sSPIN}, s{sSPIN}, 1")
        a.raw(f"s_cmp_lt_i32 s{sSPIN}, 0")
        a.raw(f"s_cbranch_scc1 {done}")
        for x in [reload] if isinstance(reload, str) else reload:
            a.raw(x)
        a.raw("s_waitcnt vmcnt(0)")
        for x in check:
            a.raw(x)
        a.raw(f"{branch_retry} {retry}")
        a.label(done)

    def bg(self, dmas=(), moves=(), where=None):
        out = []
        for b in dmas:
            out += sum(self.b_pair(b), [])
        if where is not None:
            pf = self.pf_b(where)
            out += pf + ["s_mov_b64 exec, -1"] * bool(pf)
        for b in moves:
            out += sum(self.move_pair(b), [])
        return out

    def ffn_epilogue(self):
        a = self.a
        fd, fm = self.cfg["fd"], self.cfg["fm"]
        pend = []
        for n in range(14):
            k, half = n >> 1, n & 1
            src = ACC + 16 * k + 8 * half
            t = TMP + 8 * (n & 1)
            o = TMP + 16 + 4 * (n % 3)
            if n and n % 4 == 0:
                self.ts(f"silu{n}")
            self.emit(self.bg(fd[n][:1]))
            for i in range(4):
                a(f"v_pk_mul_f32 {vr(t + 2 * i, 2)}, {vr(src + 2 * i, 2)}, {sp(cNL2E)}")
            for i in range(8):
                a(f"v_exp_f32 v{t + i}, v{t + i}")
            for i in range(4):
                a(f"v_pk_add_f32 {vr(t + 2 * i, 2)}, {vr(t + 2 * i, 2)}, {sp(cONE)}")
            self.emit(self.bg(fd[n][1:], fm[n], f"e{n}"))
            for i in range(8):
                a(f"v_rcp_f32 v{t + i}, v{t + i}")
            for i in range(4):
                a(f"v_pk_mul_f32 {vr(t + 2 * i, 2)}, {vr(t + 2 * i, 2)}, {vr(src + 2 * i, 2)}")
            for i in range(4):
                a(f"v_cvt_pk_bf16_f32 v{o + i}, v{t + 2 * i}, v{t + 2 * i + 1}")
            if n == 8:
                a(f"s_add_u32 s{sHA}, s{sHA}, 4096")
                a(f"s_add_u32 s{sHB}, s{sHB}, 4096")
            so = sH3 if k == 6 else (sHB if k & 1 else sHA)
            off = 1024 * half + (2048 if k in (2, 3) else 0)
            pend.append(f"buffer_store_dwordx4 {vr(o)}, v{vL16}, {srd(SWS)}, s{so} offen offset:{off} sc1")
            if n:
                self.emit(pend, "H")
                pend = []
            if n == 6:
                self.get_nonce()
        self.ts("pub")
        self.emit(self.bg(range(self.nb, self.cfg["fpre"])))
        a.wait_vm("H")
        self.set_flag(sFL)
        self.ts("flag")
        self.emit(self.bg([], range(self.nm, NB_REG)))
        self.emit(self.bg(range(self.nb, 36)))
        a(self.poll_load(sPH), "poll")

    def phi(self, src, dst, n, bg1=(), bg2=(), bg3=()):
        a = self.a
        t = TMP + 16 * (n & 1)
        u = t + 8
        for i in range(4):
            a(f"v_pk_mul_f32 {vr(t + 2 * i, 2)}, {vr(src + 2 * i, 2)}, {sp(cL2E)}")
        for i in range(4):
            a(f"v_pk_add_f32 {vr(u + 2 * i, 2)}, {vr(src + 2 * i, 2)}, {sp(cEPS)}")
        self.emit(bg1)
        for i in range(8):
            a(f"v_exp_f32 v{t + i}, v{t + i} clamp")
        self.emit(bg2)
        for i in range(8):
            a(f"v_max_f32 v{u + i}, s{cEPS}, v{u + i}")
        self.emit(bg3)
        for i in range(4):
            a(f"v_pk_add_f32 {vr(t + 2 * i, 2)}, {vr(t + 2 * i, 2)}, {vr(u + 2 * i, 2)}")
        for i in range(4):
            a(f"v_cvt_pk_bf16_f32 v{dst + i}, v{t + 2 * i}, v{t + 2 * i + 1}")

    def att_epilogue(self):
        a = self.a
        KA, VA, QA, LG = ACC, ACC + 32, ACC + 64, ACC + 96
        PK, PV, KV, ZZ, MM = 128, 144, 16, 168, 48
        G, GB, GO = 164, 165, 166
        c = self.cfg
        kb = lambda i, w=None: self.bg(c["kd"][i], c["km"][i], w)
        cv = lambda n: [f"v_cvt_pk_bf16_f32 v{PV + i}, v{VA + 2 * i}, v{VA + 2 * i + 1}" for i in range(4 * n, 4 * n + 4)]
        mk = lambda n: f"v_mfma_f32_32x32x16_bf16 {vr(KV, 16)}, {vr(PK + 4 * n)}, {vr(PV + 4 * n)}, {vr(KV, 16) if n else 0}"
        mz = lambda n: f"v_mfma_f32_32x32x16_bf16 {vr(ZZ, 16)}, {vr(PK + 4 * n)}, {vr(ONES)}, {vr(ZZ, 16) if n else 0}"
        gate = [f"v_mul_f32 v{G}, s{cNL2E}, v{LG}", f"v_exp_f32 v{G}, v{G}", f"v_add_f32 v{G}, 1.0, v{G}",
                f"v_rcp_f32 v{G}, v{G}", f"ds_write_b32 v{e2}, v{G}"]
        self.phi(KA, PK, 0, kb(0), kb(1, "e0"), cv(0))
        self.phi(KA + 8, PK + 4, 1, kb(2) + [mz(0)], kb(3, "e1"), cv(1))
        self.get_nonce()
        a(f"s_and_b32 s{sNO2}, s{sNON}, 0xbfff")
        self.phi(KA + 16, PK + 8, 2, [mk(0)] + gate[:2] + kb(4), [mz(1)] + gate[2:4] + kb(5), [mk(1)] + cv(2))
        self.phi(KA + 24, PK + 12, 3, [mz(2), gate[4]] + kb(6), [mk(2), f"v_mov_b32 v{vT16}, s{sNO2}"] + kb(7), cv(3))
        a(mz(3))
        a(mk(3))
        self.emit(kb(8))
        for h in range(2):
            for r in range(8 * h, 8 * h + 8):
                x, y = (KV + r, ZZ + r) if h == 0 else (ZZ + r, KV + r)
                a(f"v_cndmask_b32 v{MM + r}, v{x}, v{y}, {sp(cM16)}")
                if r % 4 == 3:
                    a(f"ds_write_b128 v{e0 + h}, {vr(MM + r - 3)} offset:{512 * ((r >> 2) & 1)}")
        a.wait_all(vm=False)
        a("s_barrier")
        a(f"ds_read_b128 {vr(64)}, v{e3}")
        a(f"ds_read_b128 {vr(68)}, v{e3} offset:4096")
        a(f"ds_read_b32 v72, v{e4}")
        a(f"ds_read_b32 v73, v{e4} offset:128")
        a(f"ds_read_b32 v{GB}, v{e2x}")
        a(f"ds_read_b32 v{GO}, v{e5}")
        a(f"v_pk_add_f32 {vr(64, 2)}, {vr(64, 2)}, {vr(68, 2)}")
        a(f"v_pk_add_f32 {vr(66, 2)}, {vr(66, 2)}, {vr(70, 2)}")
        a(f"v_add_f32 v72, v72, v73")
        a(f"v_cvt_pk_bf16_f32 v64, v64, v65")
        a(f"v_cvt_pk_bf16_f32 v65, v66, v67")
        a(f"v_cvt_pk_bf16_f32 v66, v72, v72")
        a(f"v_and_or_b32 v66, v66, s{cM16}, v{vT16}")
        a(f"buffer_store_dwordx3 {vr(64, 3)}, v{e6}, {srd(SWS)}, s{sKS} offen sc1", "KV")
        self.ts("pub")
        PQ = 128
        for n in range(4):
            self.phi(QA + 8 * n, PQ + 4 * n, n, self.bg(c["qd"][n][:2]), self.bg([], c["qm"][n], f"e{n + 2}"),
                     self.bg(c["qd"][n][2:]))
        a(f"v_sub_f32 v{GO}, 1.0, v{GO}")
        self.ts("phiq")
        P0, S = 16, 96
        ld = lambda p: (f"buffer_load_dwordx3 {vr(P0 + 4 * p, 3)}, v{e7 if p & 4 else e6}, {srd(SWS)}, "
                        f"s{sKV2 if p & 8 else sKV} offen offset:{KVP * (p & 3)} sc1")
        for p in range(16):
            a(ld(p))
        a(f"buffer_store_dword v{GO}, v{vOMa}, {srd(SWS)}, s{sH3} offen sc1", "O")
        self.emit(self.bg(c["n1"]))
        self.ts("kvld")
        for h in range(2):
            ps = range(8 * h, 8 * h + 8)
            chk = [f"v_xor_b32 v9, s{sNO2}, v{P0 + 4 * ps[0] + 2}"]
            chk += [f"v_bitop3_b32 v9, s{sNO2}, v{P0 + 4 * p + 2}, v9 bitop3:0xbe" for p in ps[1:]]
            chk += ["v_cmp_ne_u16 vcc, 0, v9"]
            self.spin(chk, [ld(p) for p in ps], "s_cbranch_vccz", "s_cbranch_vccnz")
            self.ts(f"kv{h}")
            for p in ps:
                w = P0 + 4 * p
                if p == 0:
                    self.emit([f"v_lshlrev_b32 v{S}, 16, v{w}", f"v_and_b32 v{S + 1}, s{cM16}, v{w}",
                               f"v_lshlrev_b32 v{S + 2}, 16, v{w + 1}", f"v_and_b32 v{S + 3}, s{cM16}, v{w + 1}",
                               f"v_and_b32 v{S + 4}, s{cM16}, v{w + 2}"])
                else:
                    for i in range(5):
                        a(f"v_dot2c_f32_bf16 v{S + i}, s{cONE if i & 1 or i == 4 else cD0}, v{w + (i >> 1)}")
                self.emit(self.bg(c["sd"].get(str(p), []), c["sm"].get(str(p), [])))
        a(f"v_cvt_pk_bf16_f32 v{S}, v{S}, v{S + 1}")
        a(f"v_cvt_pk_bf16_f32 v{S + 1}, v{S + 2}, v{S + 3}")
        a(f"v_cvt_pk_bf16_f32 v{S + 4}, v{S + 4}, v{S + 4}")
        a(f"ds_write_b64 v{f0}, {vr(S, 2)}")
        a("s_mov_b64 exec, 0xffff")
        a(f"ds_write_b16 v{f1}, v{S + 4}")
        a("s_mov_b64 exec, -1")
        self.ts("kvsum")
        a.wait_all(vm=False)
        a("s_barrier")
        F = 144
        a(f"ds_read_b128 {vr(F)}, v{f3}")
        a(f"ds_read_b128 {vr(F + 4)}, v{f3} offset:576")
        for n in range(4):
            rf, h = n >> 1, n & 1
            a(f"v_mfma_f32_32x32x16_bf16 {vr(16 + 16 * n, 16)}, {vr(F + 4 * h)}, {vr(PQ + 8 * rf + 4 * h)}, 0")
        for n in range(4):
            rf, h = n >> 1, n & 1
            d = 16 + 16 * n
            o = TMP + 4 * n
            a(f"v_add_f32 v{d + 8}, s{cEPS}, v{d + 8}")
            a(f"v_rcp_f32 v{d + 8}, v{d + 8}")
            a(f"v_mul_f32 v{d + 8}, v{d + 8}, v{GB if rf else G}")
            for i in range(4):
                a(f"v_pk_mul_f32 {vr(d + 2 * i, 2)}, {vr(d + 2 * i, 2)}, {vr(d + 8, 2)} op_sel_hi:[1,0]")
            for i in range(4):
                a(f"v_cvt_pk_bf16_f32 v{o + i}, v{d + 2 * i}, v{d + 2 * i + 1}")
            a(f"buffer_store_dwordx4 {vr(o)}, v{vL16}, {srd(SWS)}, s{sHB if rf else sHA} offen offset:{1024 * h} sc1", "O")
        self.ts("ostored")
        a(self.poll_load(sPH), "poll")
        self.emit(self.bg(range(self.nb, 36)))
        a.wait_vm("O")
        self.set_flag(sFL)
        self.ts("oflag")

    def a_load(self, b, rf):
        a = self.a
        s = sA0 + rf
        r = b % 7 if b < 28 else b - 28
        if b == 28:
            a(f"s_add_u32 s{s}, s{s}, s{sJ}")
        elif r == 4:
            a(f"s_add_u32 s{s}, s{s}, 4096")
        elif r == 0 and b:
            if rf == 0:
                a(f"s_cmp_eq_u32 s{sROT}, {4 - b // 7}")
                a(f"s_cselect_b32 s{sT2}, {28 * K}, 0")
                a(f"s_sub_u32 s{sT2}, {3 * K}, s{sT2}")
            a(f"s_add_u32 s{s}, s{s}, s{sT2}")
        dst = ar(A_RING + 8 * (b % A_DEPTH) + 4 * rf)
        a(f"buffer_load_dwordx4 {dst}, v{vL16}, {srd(SWS)}, s{s} offen offset:{1024 * (r % 4)} sc1", f"A{b}")

    def phase2(self):
        a = self.a
        OM, BB = 80, 144
        D, op = self.cfg["depth"], self.cfg["opoll"]
        assert self.nb == 36 and self.nm == NB_REG
        self.poll_check(sPH)
        self.ts("hpoll")
        for b in range(D):
            self.a_load(b, 0)
            self.a_load(b, 1)
        scale = lambda n: [f"v_pk_mul_f32 {vr(ACC + 16 * n + 2 * i, 2)}, {vr(ACC + 16 * n + 2 * i, 2)}, "
                           f"{vr(OM + 16 * (n >> 1) + 2 * i, 2)}" for i in range(8)]
        assert op + D <= 28 - D
        for b in range(36):
            if b in (0, 1, 4, 8, 12, 18, 24, 30):
                self.ts(f"b{b}")
            nxt = []
            if NB_REG <= b + 1 < 36:
                a.wait_vm(f"B{b + 1}")
                nxt = self.b_reads(b + 1, lambda o: vr(BB + 8 * ((b + 1) & 1) + o, 2))
            for n in range(4):
                rf, ct = n >> 1, n & 1
                d = vr(ACC + 16 * n, 16)
                af = ar(A_RING + 8 * (b % A_DEPTH) + 4 * rf)
                bf = ar(8 * b + 4 * ct) if b < NB_REG else vr(BB + 8 * (b & 1) + 4 * ct)
                a(f"v_mfma_f32_32x32x16_bf16 {d}, {af}, {bf}, {d if b else 0}")
                if n < 2:
                    self.emit(nxt[2 * n:2 * n + 2])
                if ct == 1 and b + D < 36:
                    self.a_load(b + D, rf)
                if (b, n) in ((27, 2), (27, 3), (28, 0), (28, 1)):
                    self.emit(scale((n + 2) & 3))
                if n == 3 and b == op:
                    a(self.poll_load(sPG), "poll")
                if n == 2 and b == op + D:
                    self.poll_check(sPG)
                    self.ts("opoll")
                    a(f"buffer_load_dword v{vOMv}, v{vOMa}, {srd(SWS)}, s{sOM} offen sc1")
                    if self.cfg["opf"]:
                        self.emit(lanes(16) + [(f"buffer_load_dword v{vD}, v{vAP}, {srd(SWS)}, s{sAP} offen sc1", "PF"),
                                               "s_mov_b64 exec, -1"])
                if n == 2 and b == 24:
                    a(f"ds_write_b32 v{vOMw}, v{vOMv}", "om")
                if n >= 2 and b == 25:
                    a.wait_lg("om")
                    for q in range(4):
                        a(f"ds_read_b128 {vr(OM + 16 * rf * ct + 4 * q)}, v{vOMr} offset:{128 * ct + 32 * q}")
        self.ts("p2end")
        a(f"s_mov_b32 m0, s{sBA}")
        for r in range(64):
            a(f"ds_write_addtid_b32 v{ACC + r} offset:{256 * r}")
        a.wait_all(vm=False)
        a("s_barrier")
        R = 80
        for u in range(4):
            i, ct = u >> 1, u & 1
            for p in range(4):
                a(f"ds_read_b128 {vr(R + 16 * u + 4 * p)}, v{vRa} offset:{16384 * p + 4096 * ct + 1024 * i}")
        for u in range(4):
            i, ct = u >> 1, u & 1
            b = R + 16 * u
            for h in range(2):
                a(f"v_pk_add_f32 {vr(b + 2 * h, 2)}, {vr(b + 2 * h, 2)}, {vr(b + 4 + 2 * h, 2)}")
                a(f"v_pk_add_f32 {vr(b + 8 + 2 * h, 2)}, {vr(b + 8 + 2 * h, 2)}, {vr(b + 12 + 2 * h, 2)}")
            for h in range(2):
                a(f"v_pk_add_f32 {vr(b + 2 * h, 2)}, {vr(b + 2 * h, 2)}, {vr(b + 8 + 2 * h, 2)}")
            a(f"v_cvt_pk_bf16_f32 v{b}, v{b}, v{b + 1}")
            a(f"v_cvt_pk_bf16_f32 v{b + 1}, v{b + 2}, v{b + 3}")
            a(f"buffer_store_dwordx2 {vr(b, 2)}, v{vOa}, {srd(SOUT)}, s{sO1 if i else sO0} offen offset:{64 * ct}")
        if self.diag:
            self.ts("stored")
            a.wait_all()
            self.ts("end")
            a(f"s_memrealtime {sp(sTS + 6)}")
            self.ts_flush()
            for lane, r in ((60, sTS + 2), (61, sTS + 4), (62, sTS + 6), (63, sSPIN)):
                a(f"v_writelane_b32 v{vTS}, s{r}, {lane}")
            a(f"s_lshl2_add_u32 s{sT0}, s2, s{sW}")
            a(f"s_lshl_b32 s{sT0}, s{sT0}, 8")
            a(f"s_add_u32 s{sT0}, s{sT0}, {WS_TS}")
            a(f"buffer_store_dword v{vTS}, v{vOMa}, {srd(SWS)}, s{sT0} offen")
        a("s_endpgm")

    def build(self):
        a = self.a
        self.common()
        st = a.state()
        saved = {}
        for role in ("ffn", "att"):
            self.role, self.pitch = role, 3584 if role == "ffn" else 3072
            if role == "att":
                a.label("L_att")
                a.set_state(st)
            self.early(role)
            saved[role] = (a.state(), self.ts_pend)
            self.ts_pend = None
            a.raw(f"s_branch L_{role}_rest")
        for role in ("ffn", "att"):
            self.role, self.pitch = role, 3584 if role == "ffn" else 3072
            if role == "att":
                a.raw(".p2align 7")
            a.label(f"L_{role}_rest")
            state, self.ts_pend = saved[role]
            a.set_state(state)
            self.setup(role)
            self.main_loop(role)
            self.ffn_epilogue() if role == "ffn" else self.att_epilogue()
            self.phase2()
        a.label("L_exit")
        head = open("cdna_kernels/" + KNAME[:-7] + ".s.ref").read().split("; Override")[0]
        return (head + "; @launch grid=(256,1,1) block=(256,1,1) lds=163840\n"
                + '.amdgcn_target "amdgcn-amd-amdhsa--gfx950"\n.text\n'
                + f".globl {KNAME}\n.p2align 8\n.type {KNAME},@function\n{KNAME}:\n"
                + a.text() + "  s_endpgm\n"
                + f'.section .rodata,"a"\n.p2align 6\n.amdhsa_kernel {KNAME}\n'
                + "  .amdhsa_next_free_vgpr 512\n  .amdhsa_next_free_sgpr 102\n  .amdhsa_accum_offset 256\n"
                + "  .amdhsa_group_segment_fixed_size 0\n  .amdhsa_kernarg_size 80\n  .amdhsa_user_sgpr_count 2\n"
                + "  .amdhsa_user_sgpr_kernarg_segment_ptr 1\n  .amdhsa_system_sgpr_workgroup_id_x 1\n"
                + "  .amdhsa_float_denorm_mode_32 3\n.end_amdhsa_kernel\n")


if __name__ == "__main__":
    out = sys.argv[1]
    diag = len(sys.argv) > 2 and sys.argv[2] == "diag"
    cfg = json.loads(sys.argv[3]) if len(sys.argv) > 3 else None
    g = Gen2(diag, cfg)
    txt = g.build()
    open(out, "w").write(txt)
    if diag:
        json.dump(g.tsn, open(out + ".json", "w"))
    print("instructions", len(g.a.out), "nop states", g.a.nops)
```

```python
import sys, json
import gen_kernel as G0
G0.SWO, G0.SW, G0.SG, G0.SDBG, G0.SW2, G0.SWS, G0.SOUT = 8, 12, 16, 20, 24, 28, 32
from gen_kernel import *

SWA = 88
sK, sROT, sPO, sNO2, sEX, cD0 = 47, 48, 54, 55, 84, 86
sKS1, sKS2 = 49, 87
sKV, sKS, sFL, sPH, sPG, sJ, sOM, sO0, sO1, sAP, sKV2 = 3, 92, 93, 94, 95, 96, 97, 98, 99, 100, 101
vPX, vPW, vPB, vE, vD = 248, 249, 250, 251, 252
vOMa, vOMw, vOMr, vOMv, vRa, vOa, vAP, vT16 = range(206, 214)
e0, e1, e2, e2x, e3, e4, e5, e6, e7, f0, f1, f3 = range(116, 128)
ONES = 4
vW2 = vPX
sTA, sTB, sTW, sAO, sBW, sBO, sAB = sROT, 0, 1, sJ, sAP, sPO, 84
FA = WS_KVF - WS_HF
STEP = [(sTA, b >> 2, b & 3) for b in range(16)] + [(sTB, b // 3, b % 3) for b in range(12)] + \
       [(sTW, b >> 1, b & 1) for b in range(8)]
B_OF = [0, 1, 2, 3, 16, 17, 18, 28, 29] + list(range(4, 16)) + list(range(19, 28)) + list(range(30, 36))
L_OF = [B_OF.index(b) for b in range(36)]
KVP = 768


def lanes(n):
    if n == 64:
        return ["s_mov_b64 exec, -1"]
    if n < 32:
        return [f"s_mov_b64 exec, {(1 << n) - 1:#x}"]
    return ["s_mov_b32 exec_lo, -1", f"s_mov_b32 exec_hi, {(1 << (n - 32)) - 1:#x}"]


class Gen2(Gen):
    def __init__(self, diag=False, cfg=None):
        base = dict(cap=4, depth=8, opf=1, cpf=1, pipe=1, opoll=2, wopf="x", krot=6, brot=1, rev=1, xpar=1, mpf="p", tlb="x",
                    st6=5, st7=2, st7p=2, mv7=0,
                    fd=[1] * 14, fm=[0, 1, 2, 2, 2, 2, 2, 0, 0, 1, 1, 1, 1, 0],
                    fpre=36, apre=36, ins=2, fa=11, pa=12, flate=0, alate=8, catch=2,
                    gb=[[2, 8], [-1, 7]], go=[12, 20],
                    kd=[1, 1, 1, 1, 0, 0, 0, 0, 0], km=[0, 0, 0, 2, 0, 0, 0, 0, 2],
                    qd=[2, 2, 1, 0], qm=[3, 2, 2, 2], n1=6,
                    sd=[1, 0] * 8, sm=[0, 1, 1, 1, 1, 1] + [0] * 10)
        base.update(cfg or {})
        super().__init__(diag, base)
        self.a.pipe = bool(self.cfg["pipe"])
        self.pre = []

    def ts0(self, name, reg):
        if self.diag:
            for r in self.tsn:
                self.tsn[r].append(name)
            self.pre.append((len(self.tsn["ffn"]) - 1, reg))
            self.a(f"s_memtime {sp(reg)}")

    def emit(self, items, tag=None):
        for x in items:
            if x == []:
                continue
            if callable(x):
                x()
            elif isinstance(x, tuple):
                self.a(*x)
            else:
                self.a(x, tag)

    def common(self):
        a = self.a
        a("s_cmpk_ge_u32 s2, 256")
        a("s_cbranch_scc1 L_exit")
        if self.diag:
            a(f"s_memrealtime {sp(sTS + 2)}")
            a(f"s_memtime {sp(sTS + 4)}")
        a("s_load_dwordx16 s[4:19], s[0:1], 0")
        a("s_load_dwordx4 s[20:23], s[0:1], 64")
        self.emit([
            "v_lshrrev_b32 v4, 6, v0",
            f"v_and_b32 v{vL}, 63, v0",
            f"v_readfirstlane_b32 s{sW}, v4",
            f"v_lshrrev_b32 v4, 3, v{vL}",
            f"v_lshrrev_b32 v5, 4, v{vL}",
            f"v_and_b32 v6, 7, v{vL}",
            f"s_andn2_b32 s{sT0}, 1, s2" if self.cfg.get("flip") else f"s_and_b32 s{sT0}, s2, 1",
            f"s_lshr_b32 s{sT1}, s2, 5",
            f"s_lshl3_add_u32 s{sRB}, s{sT0}, s{sT1}",
            "v_xor_b32 v7, v5, v6",
            "v_lshlrev_b32 v7, 4, v7",
            f"s_bfe_u32 s{sT0}, s2, 0x20003",
            f"s_lshl1_add_u32 s{sK}, s{sT0}, s{sT1}",
            f"s_sub_u32 s{sK}, 0, s{sK}" if self.cfg["rev"] else [],
            f"s_and_b32 s{sK}, s{sK}, {self.cfg['krot']}"] + ([
            f"s_lshr_b32 s{sT2}, s2, 1",
            f"s_xor_b32 s{sT2}, s{sT2}, s2",
            f"s_and_b32 s{sT2}, s{sT2}, 1",
            f"s_add_u32 s{sK}, s{sK}, s{sT2}"] if self.cfg["xpar"] else []) + [
            f"v_lshl_add_u32 v{vDX}, v4, 10, v7",
            f"v_xor_b32 v{vDX + 1}, 64, v{vDX}",
            f"s_lshl2_add_u32 s{sOX}, s{sRB}, s{sW}",
            f"s_lshl_b32 s{sOX}, s{sOX}, 8",
            f"s_add_u32 s{sOX}, s{sOX}, s{sK}",
            f"s_lshl_b32 s{sOX}, s{sOX}, 7",
            f"v_add_u32 v{vDX + 1}, 7168, v{vDX + 1}",
            f"v_add_u32 v{vDX + 2}, 14336, v{vDX}",
            f"s_lshl_b32 s{sMX}, s{sW}, 12",
            f"s_and_b32 s{sT0}, s2, 6",
            f"s_bfe_u32 s{sCOL}, s2, 0x10004",
            f"v_add_u32 v{vDX + 3}, 14336, v{vDX + 1}",
            f"v_lshlrev_b32 v{vL16}, 4, v{vL}",
            f"s_add_u32 s{sCOL}, s{sCOL}, s{sT0}",
            f"s_lshl2_add_u32 s{sOW}, s{sK}, s{sW}",
            "s_bitcmp1_b32 s2, 3",
            "s_cbranch_scc1 L_att"])

    def code_prefetch(self, role):
        pc, end = f"L_pc_{role}", "L_att_rest" if role == "ffn" else "L_exit"
        first = f"L_{role}_rest"
        self.emit([f"s_getpc_b64 {sp(sT0)}", lambda: self.a.label(pc),
                   f"s_lshr_b32 s{sT3}, s2, 4",
                   f"s_lshl_b32 s{sT3}, s{sT3}, 11",
                   f"s_add_u32 s{sT3}, s{sT3}, {first}-{pc}",
                   "v_lshrrev_b32 v10, 4, v0",
                   "v_and_b32 v11, 3, v0",
                   "v_add_u32 v10, v10, v11",
                   f"v_lshl_add_u32 v10, v10, 7, s{sT3}",
                   f"v_min_u32 v10, {end}-{pc}, v10",
                   f"v_mov_b32 v11, s{sT1}",
                   f"v_add_co_u32 v10, vcc, s{sT0}, v10",
                   "v_addc_co_u32 v11, vcc, 0, v11, vcc",
                   "s_mov_b64 exec, 0xf",
                   (f"global_load_dword v{vD}, v[10:11], off", "PFc"),
                   "s_mov_b64 exec, -1"])

    def stage_items(self, role, s):
        sw = SW if role == "ffn" else SWA
        base = STAGE[s % 3]
        xs = [f"buffer_load_dwordx4 v{vDX + i}, {srd(SX)}, s{sOX} offen offset:{1024 * i} lds" for i in range(4)]
        n = 7 if role == "ffn" else 6
        ws = [f"buffer_load_dwordx4 v{vDW + m}, {srd(sw)}, s{sOW} offen offset:{1024 * (m % 4)} lds" for m in range(n)]
        step = [f"s_cmp_eq_u32 s{sK}, {7 - s}", f"s_cselect_b32 s{sKS1}, -7, 1"]
        slots = [[f"s_add_u32 m0, s{sMX}, {base}", xs[0]], [xs[1]] + step, [xs[2], f"s_lshl_b32 s{sKS2}, s{sKS1}, 7"],
                 [xs[3], f"s_add_u32 s{sOX}, s{sOX}, s{sKS2}"]]
        for m, t in enumerate(ws):
            pre = [f"s_add_u32 m0, s{sMW}, {base + 16384 + 1024 * m}"] if m in (0, 4) else []
            post = []
            if m == 1:
                post = [f"s_mul_i32 s{sKS1}, s{sKS1}, {64 * self.pitch}"]
            if m == n - 1:
                post = [f"s_add_u32 s{sOW}, s{sOW}, s{sKS1}"]
            slots.append(pre + [t] + post)
        return [[(x, f"S{s}") for x in sl] for sl in slots]

    def pf_b(self, where):
        if str(self.cfg["wopf"]) == str(where):
            return lanes(32) + [(f"buffer_load_dword v{vD + 2}, v{vPB}, {srd(SWO)}, s{sPO} offen", "PF")]
        return []

    def pf_chip(self, where):
        out = []
        if self.cfg["mpf"] == where:
            out += [f"s_lshl2_add_u32 s{sT2}, s2, s{sW}", f"s_mul_i32 s{sT3}, s{sT2}, {14 * 128}",
                    f"s_lshl_b32 s{sT2}, s{sT2}, 9", f"v_lshlrev_b32 v9, 7, v{vL}"] + lanes(14)
            out += [(f"buffer_load_dword v{vD + 1}, v9, {srd(SW2)}, s{sT3} offen", "PF")] + lanes(4)
            out += [(f"buffer_load_dword v{vD + 2}, v9, {srd(SWO)}, s{sT2} offen", "PF")]
        if self.cfg["tlb"] == where:
            out += ["s_mov_b64 exec, -1", f"s_lshl2_add_u32 s{sT2}, s2, s{sW}", f"s_lshl_b32 s{sT2}, s{sT2}, 7",
                    f"v_lshlrev_b32 v9, 21, v{vL}", f"s_mov_b32 s{SOUT + 2}, {2048 * 1024}",
                    f"s_mov_b32 s{SOUT + 3}, 0x20000"] + lanes(6)
            out += [(f"buffer_load_dword v{vPX}, v9, {srd(SWS)}, s{sT2} offen", "PF"), f"v_lshlrev_b32 v9, 20, v{vL}"]
            out += lanes(2) + [(f"buffer_load_dword v{vPW}, v9, {srd(SOUT)}, s{sT2} offen", "PF")]
        return out + ["s_mov_b64 exec, -1"] * bool(out)

    def early(self, role):
        a = self.a
        ffn = role == "ffn"
        sw, pitch = (SW, 3584) if ffn else (SWA, 3072)
        v8 = ["v_lshlrev_b32 v8, 2, v5", "v_and_b32 v8, 4, v8", "v_xor_b32 v8, v8, v6", "v_lshlrev_b32 v8, 4, v8"]
        if ffn:
            a(f"v_mul_u32_u24 v9, 9363, v{vL}")
            a(f"s_movk_i32 s{sT1}, 3136")
            a(f"v_add_u32 v11, 4096, v{vL16}")
        else:
            self.emit(v8 + [f"v_mul_u32_u24 v9, 3072, v4", f"v_add_u32 v9, v9, v8"])
        sal = [f"s_mul_i32 s{sOW}, s{sOW}, {16 * pitch}",
               f"s_mul_i32 s{sT0}, s{sCOL}, {448 if ffn else 128}",
               f"s_add_u32 s{sOW}, s{sOW}, s{sT0}",
               f"s_mul_i32 s{sMW}, s{sW}, {7168 if ffn else 6144}"]
        for m in range(7 if ffn else 6):
            if ffn:
                if m:
                    a(f"v_add_u32 v9, {64 * 9363}, v9")
                a(f"v_lshrrev_b32 v10, 18, v9")
                a(f"v_mad_u32_u24 v{vDW + m}, v10, s{sT1}, v{11 if m >= 4 else vL16}")
            else:
                off = (m & 1) * 8 * 3072 + (1024, 2048, 0)[m >> 1] - 1024 * (m % 4)
                a(f"v_add_u32 v{vDW + m}, {off}, v9")
            if sal:
                a(sal.pop(0))
        if self.diag:
            self.tsn[role].append("addr")
            a(f"s_memtime {sp(96)}")
        a.wait_all(vm=False)
        self.ts("karg")
        if ffn:
            a(f"s_mov_b64 {sp(SW2)}, s[14:15]")
        else:
            a(f"s_mov_b64 {sp(SWA)}, s[6:7]")
        for r, n in ((SX, 2048 * 1024), (sw, 512 * pitch)):
            a(f"s_mov_b32 s{r + 2}, {n}")
            a(f"s_mov_b32 s{r + 3}, 0x20000")
        for sl in self.stage_items(role, 0):
            self.emit(sl)
        if self.diag:
            a(f"v_writelane_b32 v{vTS}, s96, 0")
        self.ts("s0iss")
        if self.cfg["cpf"]:
            self.code_prefetch(role)
        if ffn:
            self.emit(v8)

    def setup(self, role):
        a = self.a
        ffn = role == "ffn"
        if not ffn:
            a(f"s_mov_b64 {sp(SW2)}, s[14:15]")
        self.emit([
            f"s_mov_b64 {sp(SOUT)}, s[18:19]",
            f"s_mov_b64 {sp(SWS)}, s[22:23]",
            f"s_lshr_b32 s{sRH}, s{sW}, 1",
            f"s_and_b32 s{sCH}, s{sW}, 1",
            f"v_and_b32 v10, 31, v{vL}",
            f"v_lshrrev_b32 v11, 5, v{vL}",
            f"v_bfe_u32 v12, v{vL}, 1, 3",
            "v_xor_b32 v12, v12, v11",
            "v_lshlrev_b32 v12, 4, v12",
            "v_lshl_add_u32 v12, v10, 7, v12",
            f"s_add_u32 s{sT0}, s{sMX}, {STAGE[0]}",
            f"s_xor_b32 s{sT1}, s{sMX}, 4096",
            f"s_add_u32 s{sT1}, s{sT1}, {STAGE[0]}"])
        for t in range(4):
            a(f"v_xor_b32 v13, {32 * t}, v12")
            a(f"v_add_u32 v{vXA + t}, s{sT0}, v13")
            a(f"v_add_u32 v{vXB + t}, s{sT1}, v13")
        self.emit([
            f"v_bfe_u32 v13, v{vL}, 2, 2",
            f"v_bfe_u32 v14, v{vL}, 4, 1",
            "v_lshlrev_b32 v14, 5, v14",
            f"v_and_b32 v15, 3, v{vL}",
            "v_lshl_add_u32 v14, v15, 3, v14",
            "v_lshl_add_u32 v15, v11, 3, v13"])
        if ffn:
            self.emit([
                "v_mul_u32_u24 v15, 448, v15",
                "v_add_u32 v15, v15, v14",
                f"v_add_u32 v{vW3}, {STAGE[0] + 16384 + 192}, v15",
                f"s_mul_i32 s{sT0}, s{sCH}, 320",
                f"s_add_u32 s{sT0}, s{sT0}, {STAGE[0] + 16384}",
                f"v_add_u32 v{vW}, s{sT0}, v15",
                f"s_lshl_b32 s{sT0}, s{sCH}, 7",
                f"s_add_u32 s{sT0}, s{sT0}, {STAGE[0] + 16384 + 128}",
                f"v_add_u32 v{vW2}, s{sT0}, v15"])
        else:
            self.emit([
                "v_lshl_add_u32 v15, v15, 7, v14",
                "v_lshrrev_b32 v9, 1, v13",
                f"v_xor_b32 v9, s{sCH}, v9",
                "v_lshl_add_u32 v15, v9, 6, v15",
                f"v_add_u32 v{vW}, {STAGE[0] + 16384}, v15",
                f"v_lshrrev_b32 v9, 2, v{vL}",
                "v_xor_b32 v9, v9, v5",
                "v_and_b32 v9, 1, v9",
                "v_lshlrev_b32 v9, 10, v9",
                "v_lshl_add_u32 v9, v11, 4, v9",
                f"v_add_u32 v{vW3}, {L_T0}, v9"])
            for r in range(TMP, TMP + 4):
                a(f"v_mov_b32 v{r}, 0")
            a(f"v_add_u32 v9, {L_T0 + 1024}, v{vL16}")
            a(f"ds_write_b128 v9, {vr(TMP)}", "zero")
        for s, n in ((SWS, WS_BYTES), (SW2, 1792 * 1024), (SWO, 512 * 1024), (SDBG, 256), (SG, 1024)):
            a(f"s_mov_b32 s{s + 2}, {n}")
            a(f"s_mov_b32 s{s + 3}, 0x20000")
        self.emit([
            f"v_mov_b32 v{vZ}, 0"])
        if ffn:
            self.emit([f"s_or_b32 s{sT0}, s2, s{sW}", f"s_cmp_eq_u32 s{sT0}, 0",
                       f"s_cselect_b32 s{sEX}, 1, 0", f"s_mov_b32 s{sEX + 1}, 0"])
        self.ts("setup")
        if not ffn:
            a(f"s_lshl_b32 s{sT0}, s{sK}, 7")
            a(f"v_add_u32 v9, s{sT0}, v{vL16}")
            a(f"v_and_b32 v9, 1023, v9")
            a(f"s_mov_b32 m0, {L_T0}")
            a(f"buffer_load_dwordx4 v9, {srd(SG)}, 0 offen lds", "S0")
        self.emit(self.pf_chip("0"))
        for x in self.stage_items(role, 1):
            self.emit(x)
        self.emit(self.pf_chip("p"))
        tail = self.pf_b("p")
        if ffn:
            tail += [f"s_mov_b64 exec, {sp(sEX)}", (f"buffer_load_dword v{vE}, v{vZ}, {srd(SWS)}, 0 offen sc1", "E")]
        self.emit(tail + ["s_mov_b64 exec, -1"] * bool(tail))

    def fillers(self, role):
        f = []
        for c, val in ((cM16, 0xFFFF0000), (cNL2E, 0xBFB8AA3B), (cONE, 0x3F800000), (cEPS, 0x358637BD),
                       (cL2E, 0x3FB8AA3B)):
            f += [f"s_mov_b32 s{c}, {val:#x}", f"s_mov_b32 s{c + 1}, {val:#x}"]
        f += [f"s_mov_b32 s{cD0}, 0x3f80",
              f"s_mov_b32 s{sSPIN}, {self.cfg['spin']}",
              f"s_mov_b32 s{SOUT + 2}, {2048 * 1024}",
              f"s_mov_b32 s{SOUT + 3}, 0x20000",
              f"s_and_b32 s{sRT}, s2, 7",
              f"s_lshr_b32 s{sT0}, s2, 6",
              f"s_lshl2_add_u32 s{sRT}, s{sRT}, s{sT0}",
              f"s_bfe_u32 s{sCC}, s2, 0x30003",
              f"v_lshl_add_u32 v{vDB}, v4, 10, v8",
              f"v_add_u32 v{vDB + 1}, 7168, v{vDB}",
              f"s_mul_i32 s{sBW}, s{sW}, {448 * 1024}",
              f"s_lshl_b32 s{sT0}, s{sCC}, 7",
              f"s_add_u32 s{sBW}, s{sBW}, s{sT0}",
              f"s_lshl_b32 s{sBO}, s{sW}, 17",
              f"s_add_u32 s{sBO}, s{sBO}, s{sT0}",
              f"s_add_u32 s{sROT}, s{sRT}, s{sCC}",
              f"s_mul_i32 s{sROT}, s{sROT}, {-1 if self.cfg['rev'] else 1}",
              f"s_and_b32 s{sROT}, s{sROT}, {3 if self.cfg['brot'] else 0}",
              f"s_lshl_b32 s{sT2}, s{sROT}, 3"]
        for tab, val in ((sTA, 0x180E0A00), (sTB, 0x15120704), (sTW, 0x06040200)):
            f += [f"s_mov_b32 s{sT0}, {val:#x}", f"s_mov_b32 s{sT1}, {val:#x}",
                  f"s_lshr_b64 {sp(sT0)}, {sp(sT0)}, s{sT2}", f"s_mov_b32 s{tab}, s{sT0}"]
        f += [
              f"s_lshl_b32 s{sBA}, s{sW}, 14",
              f"s_mul_i32 s{sBB}, s{sW}, {10 * K}",
              f"s_add_u32 s{sBB}, s{sBB}, {REGB}",
              "v_lshl_add_u32 v15, v11, 2, v13",
              "v_lshl_add_u32 v15, v15, 7, v14",
              "v_lshrrev_b32 v9, 1, v13",
              "v_lshl_add_u32 v15, v9, 6, v15",
              f"v_add_u32 v{vTA}, s{sBA}, v15",
              f"v_add_u32 v{vTB}, s{sBB}, v15",
              "v_xor_b32 v15, 64, v15",
              f"v_add_u32 v{vTA + 1}, s{sBA}, v15",
              f"v_add_u32 v{vTB + 1}, s{sBB}, v15",
              f"s_lshl1_add_u32 s{sT0}, s{sRB}, s{sRH}",
              f"s_lshl3_add_u32 s{sT0}, s{sT0}, s{sCOL}",
              f"s_lshl1_add_u32 s{sT0}, s{sT0}, s{sCH}",
              f"s_lshl_b32 s{sT0}, s{sT0}, 7",
              f"s_add_u32 s{sFL}, s{sT0}, {WS_HF if role == 'ffn' else WS_OF}",
              f"s_lshl2_add_u32 s{sT1}, s{sRB}, s{sW}",
              f"s_xor_b32 s{sT2}, s{sT1}, 1",
              f"s_mul_i32 s{sT1}, s{sT1}, {144 * K}",
              f"s_mul_i32 s{sT2}, s{sT2}, {144 * K}"]
        if role == "ffn":
            f += [f"s_mul_i32 s{sT0}, s{sCOL}, {14 * K}",
                  f"s_add_u32 s{sT0}, s{sT0}, {WS_A}",
                  f"s_add_u32 s{sH3}, s{sT1}, s{sT0}",
                  f"s_mul_i32 s{sT3}, s{sCH}, {10 * K}",
                  f"s_add_u32 s{sHA}, s{sH3}, s{sT3}",
                  f"s_add_u32 s{sHB}, s{sT2}, s{sT0}",
                  f"s_add_u32 s{sHB}, s{sHB}, s{sT3}",
                  f"s_add_u32 s{sH3}, s{sH3}, {6 * K}"]
        else:
            f += [f"s_lshl1_add_u32 s{sT0}, s{sCOL}, s{sCH}",
                  f"s_lshl_b32 s{sT3}, s{sT0}, 11",
                  f"s_add_u32 s{sT3}, s{sT3}, {WS_A + 112 * K}",
                  f"s_add_u32 s{sHA}, s{sT1}, s{sT3}",
                  f"s_add_u32 s{sHB}, s{sT2}, s{sT3}",
                  f"s_lshl_b32 s{sT0}, s{sT0}, 13",
                  f"s_lshl1_add_u32 s{sT1}, s{sRB}, s{sRH}",
                  f"s_lshl_b32 s{sT1}, s{sT1}, 8",
                  f"s_add_u32 s{sT0}, s{sT0}, s{sT1}",
                  f"s_add_u32 s{sH3}, s{sT0}, {WS_OMG}",
                  f"v_and_b32 v12, 15, v{vL}",
                  "v_lshlrev_b32 v13, 8, v11",
                  "v_lshl_add_u32 v9, v12, 4, v13",
                  f"s_lshl_b32 s{sT0}, s{sW}, 11",
                  f"s_add_u32 s{sT0}, s{sT0}, {L_SCR}",
                  f"v_add_u32 v13, s{sT0}, v9",
                  f"s_lshl_b32 s{sT0}, s{sW}, 6",
                  f"s_add_u32 s{sT0}, s{sT0}, {L_T1}",
                  f"v_lshl_add_u32 v14, v11, 4, s{sT0}",
                  f"v_cndmask_b32 v{e0}, v13, v14, {sp(cM16)}",
                  "v_add_u32 v13, 1024, v13",
                  "v_add_u32 v14, 32, v14",
                  f"v_cndmask_b32 v{e1}, v14, v13, {sp(cM16)}",
                  f"s_lshl_b32 s{sT0}, s{sW}, 7",
                  f"s_add_u32 s{sT0}, s{sT0}, {L_T1 + 1024}",
                  f"v_lshl_add_u32 v{e2}, v10, 2, s{sT0}",
                  f"v_xor_b32 v{e2x}, 128, v{e2}",
                  f"s_lshl1_add_u32 s{sT1}, s{sCH}, s{sRH}",
                  f"s_lshl_b32 s{sT0}, s{sT1}, 10",
                  f"s_add_u32 s{sT0}, s{sT0}, {L_SCR}",
                  f"v_add_u32 v{e3}, s{sT0}, v{vL16}",
                  f"s_lshl_b32 s{sT0}, s{sT1}, 5",
                  f"s_add_u32 s{sT0}, s{sT0}, {L_T1}",
                  f"v_bfe_u32 v15, v{vL}, 3, 1",
                  "v_lshlrev_b32 v13, 9, v15",
                  "v_lshl_add_u32 v13, v6, 2, v13",
                  f"v_add_u32 v{e4}, s{sT0}, v13",
                  f"s_lshl2_add_u32 s{sT2}, s{sCOL}, s{sT1}",
                  f"s_mul_i32 s{sKV}, s{sT2}, {16 * KVP}",
                  f"s_add_u32 s{sKV}, s{sKV}, {WS_KV}",
                  f"s_add_u32 s{sKV2}, s{sKV}, {8 * KVP}",
                  f"s_mul_i32 s{sKS}, s{sRB}, {KVP}",
                  f"s_add_u32 s{sKS}, s{sKS}, s{sKV}",
                  f"v_mul_u32_u24 v{e6}, 12, v{vL}",
                  f"v_add_u32 v{e7}, {4 * KVP}, v{e6}",
                  f"s_lshl_b32 s{sT3}, s{sRH}, 8",
                  f"s_add_u32 s{sT3}, s{sT3}, {L_T1 + 1024}",
                  f"v_lshl_add_u32 v{e5}, v{vL}, 2, s{sT3}",
                  f"s_mul_i32 s{sT0}, s{sT1}, 576",
                  f"s_add_u32 s{sT0}, s{sT0}, {L_T1 + 1536}",
                  "v_lshlrev_b32 v13, 4, v10",
                  "v_lshl_add_u32 v13, v11, 3, v13",
                  f"v_add_u32 v{f0}, s{sT0}, v13",
                  f"v_bfe_u32 v13, v{vL}, 2, 1",
                  "v_lshlrev_b32 v13, 4, v13",
                  "v_lshl_add_u32 v13, v15, 3, v13",
                  f"v_and_b32 v14, 3, v{vL}",
                  "v_lshl_add_u32 v13, v14, 1, v13",
                  f"s_add_u32 s{sT0}, s{sT0}, 512",
                  f"v_add_u32 v{f1}, s{sT0}, v13",
                  f"s_mul_i32 s{sT0}, s{sCH}, 1152",
                  f"s_add_u32 s{sT0}, s{sT0}, {L_T1 + 1536}",
                  "v_lshlrev_b32 v14, 4, v11",
                  "v_add_u32 v14, 512, v14",
                  f"v_cndmask_b32 v13, v9, v14, {sp(cM16)}",
                  f"v_add_u32 v{f3}, s{sT0}, v13"]
        f += [f"v_and_b32 v{vPA}, 3, v{vL}",
              f"v_lshlrev_b32 v{vPA}, 7, v{vPA}",
              f"s_lshl2_add_u32 s{sT0}, s{sRT}, s{sW}",
              f"s_lshl_b32 s{sT0}, s{sT0}, 9",
              f"s_add_u32 s{sPH}, s{sT0}, {WS_HF}",
              f"s_add_u32 s{sPG}, s{sT0}, {WS_OF}",
              f"s_mul_i32 s{sAO}, s{sRT}, {288 * K}",
              f"s_add_u32 s{sAO}, s{sAO}, {WS_A + 112 * K}",
              f"s_lshl_b32 s{sT0}, s{sW}, 13",
              f"s_add_u32 s{sAO}, s{sAO}, s{sT0}",
              f"s_lshl_b32 s{sT0}, s{sCC}, 7",
              f"s_lshl_b32 s{sO0}, s{sRT}, 16",
              f"s_add_u32 s{sO0}, s{sO0}, s{sT0}",
              f"s_add_u32 s{sO0}, s{sO0}, s{sBA}",
              f"s_add_u32 s{sO1}, s{sO0}, 8192",
              f"s_lshl_b32 s{sT0}, s{sW}, 15",
              f"s_lshl_b32 s{sT2}, s{sRT}, 8",
              f"s_add_u32 s{sT0}, s{sT0}, s{sT2}",
              f"s_add_u32 s{sOM}, s{sT0}, {WS_OMG}",
              f"s_lshl_b32 s{sT0}, s{sW}, 8",
              f"s_add_u32 s{sT0}, s{sT0}, {L_T0}",
              f"v_lshlrev_b32 v{vOMa}, 2, v{vL}",
              f"v_add_u32 v{vOMw}, s{sT0}, v{vOMa}",
              f"v_lshl_add_u32 v{vOMr}, v11, 4, s{sT0}",
              f"s_lshl_b32 s{sT0}, s{sRH}, 13",
              f"s_lshl_b32 s{sT1}, s{sCH}, 11",
              f"s_add_u32 s{sT0}, s{sT0}, s{sT1}",
              f"v_add_u32 v{vRa}, s{sT0}, v{vL16}",
              "v_and_b32 v9, 1, v4",
              "v_lshl_add_u32 v9, v9, 2, v5",
              "v_lshlrev_b32 v13, 3, v6",
              f"v_lshl_add_u32 v{vOa}, v9, 10, v13"]
        if role == "att":
            f += [f"v_mov_b32 v{ONES + i}, 0x3f803f80" for i in range(4)]
        return f

    def reads(self, role, t):
        out = super().reads(role, t)
        if role == "ffn":
            w = WF + 16 * (t & 1) + 8
            out[3] = [(f"ds_read_b64_tr_b16 {vr(w + 2 * j, 2)}, v{vW2} offset:{t * 7168 + j * 1792}", "r1") for j in range(2)]
        return out

    def b_dma(self, l):
        base, off = self.b_slot(l)
        tab, g, r = STEP[B_OF[l]]
        rs = srd(SWO if tab == sTW else SW2)
        pre = []
        if r == 0:
            pre = [f"s_bfe_u32 s{sT3}, s{tab}, {0x80000 + 8 * g:#x}", f"s_lshl_b32 s{sT3}, s{sT3}, 14",
                   f"s_add_u32 s{sOB}, s{sT3}, s{sBO if tab == sTW else sBW}"]
        return [pre + [f"s_add_u32 m0, {base}, {off}", f"buffer_load_dwordx4 v{vDB}, {rs}, s{sOB} offen lds"],
                [f"buffer_load_dwordx4 v{vDB + 1}, {rs}, s{sOB} offen offset:1024 lds",
                 f"s_add_u32 s{sOB}, s{sOB}, 16384"]]

    def b_pair(self, b):
        assert b == self.nb and (b < NB_REG or b - NB_REG < self.nm), (b, self.nb, self.nm)
        self.nb += 1
        pre = [lambda: self.a.wait_lg(f"M{b - NB_REG}")] if b >= NB_REG else []
        s0, s1 = [[(x, f"B{b}") for x in sl] for sl in self.b_dma(b)]
        return [pre + s0, s1]

    def move_pair(self, b):
        assert b == self.nm and b < self.nb, (b, self.nb, self.nm)
        self.nm += 1
        r = [(x, f"M{b}") for x in self.b_reads(b, lambda o: ar(8 * b + o, 2))]
        return [[lambda: self.a.wait_vm(f"B{b}")] + r[:2], r[2:]]

    def stage(self, role, s):
        a = self.a
        plan = {(t, g): [] for t in range(4) for g in range(7)}
        for t in range(3):
            for g, grp in enumerate(self.reads(role, t + 1)):
                plan[t, g] += grp
        plan[3, 1] += [lambda: a.wait_vm(f"S{s + 1}"), "s_barrier"]
        if s < 7:
            for g, grp in enumerate(self.reads(role, 0)):
                plan[3, g + 1] += grp
        pos = [(t, g) for t in range(3) for g in (1, 3, 5, 6)] + [(3, g) for g in range(2, 6)]
        spread = lambda sl, n: [sl[i * len(sl) // n] if (i + 1) * len(sl) // n > i * len(sl) // n else [] for i in range(n)]
        pairs = lambda k: [sl for b in range(self.nb, self.nb + k) for sl in self.b_pair(b)]
        if s < 6:
            slots = self.stage_items(role, s + 2)
        elif s == 6:
            slots = spread(pairs(self.cfg["st6"]), 16)
        else:
            slots = spread(pairs(self.cfg["st7"]), 12) + pairs(self.cfg["st7p"])
        assert len(slots) <= len(pos)
        for p, sl in zip(pos, slots):
            pre = [x for x in sl if isinstance(x, tuple) and x[0].startswith("s_add_u32 m0")]
            at = 2 if p == (3, 1) else 0
            plan[p][at:at] = pre
            plan[p] += [x for x in sl if x not in pre]
        if s < 7:
            d = DELTA[s % 3] & 0xFFFFFFFF
            add = lambda r: f"v_add_u32 v{r}, {d:#x}, v{r}"
            plan[0, 0] += [add(vXA)]
            plan[0, 2] += [add(vXB)]
            plan[0, 4] += [add(vXA + 1), add(vXB + 1)]
            plan[1, 4] += [add(vXA + 2), add(vXB + 2)]
            plan[2, 4] += [add(vXA + 3), add(vXB + 3)]
            plan[2, 5] += [add(vW)] + [add(vW2)] * (role == "ffn")
            plan[2, 6] += [add(vW3) if role == "ffn" else f"v_add_u32 v{vW3}, 128, v{vW3}"]
        pf = self.pf_b(s)
        if pf:
            plan[3, 6 if role == "ffn" else 5] += pf + ["s_mov_b64 exec, -1"]
        if s == 2 and role == "ffn":
            plan[1, 0] += [f"v_add_u32 v{vE}, 1, v{vE}", f"v_max_u32 v{vE}, 1, v{vE}"]
            plan[1, 2] += [f"s_mov_b64 exec, {sp(sEX)}",
                           (f"buffer_store_dword v{vE}, v{vZ}, {srd(SDBG)}, 0 offen sc1", "E"),
                           (f"buffer_store_dword v{vE}, v{vZ}, {srd(SWS)}, 0 offen sc1", "E"),
                           "s_mov_b64 exec, -1"]
        if s == 6:
            plan[0, 0] += [(f"buffer_load_dword v{vNO}, v{vZ}, {srd(SDBG)}, 0 offen sc1", "nonce")]
        if s == 7:
            mv = [x for b in range(self.cfg.get("mv7", 6)) for x in self.move_pair(b)]
            mpos = [(t, g) for t in range(3) for g in (5, 6)][self.cfg.get("mv7skip", 0):] + [(3, g) for g in range(7)]
            while mv:
                for p in mpos:
                    if mv:
                        plan[p] += mv.pop(0)
                mpos = mpos[-7:]
        for t in range(4):
            a.lg = self.retag(self.retag(a.lg, "r0", "o0"), "r1", "o1")
            if t == 3:
                a.wait_lg("o0", "o1")
            for g, m in enumerate(self.mfmas(role, t)):
                if g == 0:
                    a.wait_lg("o0")
                if g == 4:
                    a.wait_lg("o1")
                if s == 0 and t == 0:
                    m = m.rsplit(",", 1)[0] + ", 0"
                a(m)
                self.emit(plan[t, g])
                cap = self.cfg["cap"] - (2 if role == "att" and g == 6 else 0)
                room = cap - len([x for x in plan[t, g] if not callable(x)])
                while room > 0 and self.fill and (s or t):
                    a(self.fill.pop(0))
                    room -= 1

    def main_loop(self, role):
        a = self.a
        self.fill = self.fillers(role)
        self.nb = self.nm = 0
        for _ in range(self.cfg.get("nsetup", 0)):
            a(self.fill.pop(0))
        self.ts("issued")
        a.wait_lg("zero")
        a.wait_vm("S0")
        a("s_barrier")
        self.ts("s0rdy")
        for grp in self.reads(role, 0):
            self.emit(grp)
        for s in range(8):
            if s == 6:
                assert not self.fill, len(self.fill)
            self.stage(role, s)
            if s in self.cfg.get("tss", (1, 3, 5)):
                self.ts(f"st{s}")
        self.ts("loopend")

    def spin(self, check, reload, branch_ok, branch_retry):
        a = self.a
        done, retry = self.lab("ok"), self.lab("retry")
        for x in check:
            a(x)
        a.raw(f"{branch_ok} {done}")
        a.label(retry)
        a.raw(f"s_sub_u32 s{sSPIN}, s{sSPIN}, 1")
        a.raw(f"s_cmp_lt_i32 s{sSPIN}, 0")
        a.raw(f"s_cbranch_scc1 {done}")
        for x in [reload] if isinstance(reload, str) else reload:
            a.raw(x)
        a.raw("s_waitcnt vmcnt(0)")
        for x in check:
            a.raw(x)
        a.raw(f"{branch_retry} {retry}")
        a.label(done)

    def bg(self, dmas=(), moves=(), where=None):
        out = []
        if isinstance(dmas, int):
            dmas = range(self.nb, min(36, self.nb + dmas))
        if isinstance(moves, int):
            moves = range(self.nm, min(NB_REG, self.nm + moves))
        for b in dmas:
            out += sum(self.b_pair(b), [])
        if where is not None:
            pf = self.pf_b(where)
            out += pf + ["s_mov_b64 exec, -1"] * bool(pf)
        for b in moves:
            out += sum(self.move_pair(b), [])
        return out

    def ffn_epilogue(self):
        a = self.a
        fd, fm = self.cfg["fd"], self.cfg["fm"]
        pend = []
        for n in range(14):
            k, half = n >> 1, n & 1
            src = ACC + 16 * k + 8 * half
            t = TMP + 8 * (n & 1)
            o = TMP + 16 + 4 * (n % 3)
            if n and n % 4 == 0:
                self.ts(f"silu{n}")
            self.emit(self.bg(min(1, fd[n])))
            for i in range(4):
                a(f"v_pk_mul_f32 {vr(t + 2 * i, 2)}, {vr(src + 2 * i, 2)}, {sp(cNL2E)}")
            for i in range(8):
                a(f"v_exp_f32 v{t + i}, v{t + i}")
            for i in range(4):
                a(f"v_pk_add_f32 {vr(t + 2 * i, 2)}, {vr(t + 2 * i, 2)}, {sp(cONE)}")
            self.emit(self.bg(max(0, fd[n] - 1), fm[n]))
            for i in range(8):
                a(f"v_rcp_f32 v{t + i}, v{t + i}")
            for i in range(4):
                a(f"v_pk_mul_f32 {vr(t + 2 * i, 2)}, {vr(t + 2 * i, 2)}, {vr(src + 2 * i, 2)}")
            for i in range(4):
                a(f"v_cvt_pk_bf16_f32 v{o + i}, v{t + 2 * i}, v{t + 2 * i + 1}")
            if n == 8:
                a(f"s_mul_i32 s{sT0}, s{sCH}, -6144")
                a(f"s_add_u32 s{sT0}, s{sT0}, 4096")
                a(f"s_add_u32 s{sHA}, s{sHA}, s{sT0}")
                a(f"s_add_u32 s{sHB}, s{sHB}, s{sT0}")
            so = sH3 if k == 6 else (sHB if k & 1 else sHA)
            off = 1024 * half + (2048 if k in (2, 3) else 0)
            pend.append(f"buffer_store_dwordx4 {vr(o)}, v{vL16}, {srd(SWS)}, s{so} offen offset:{off} sc1")
            if n:
                self.emit(pend, "Ha" if n < 8 else "H")
                pend = []
            if n == 6:
                self.get_nonce()
            if n == self.cfg["fa"]:
                a(f"s_add_u32 s{sT0}, s{sFL}, {FA}")
                a.wait_vm("Ha")
                self.set_flag(sT0)
                self.ts("flaga")
            if n == self.cfg["pa"]:
                self.emit(self.poll_a())
        self.ts("pub")
        self.emit(self.bg(range(self.nb, min(self.cfg["fpre"], self.nm + NB_REG))))
        self.emit(self.bg([], range(self.nm, NB_REG)))
        self.emit(self.bg(range(self.nb, self.cfg["fpre"])))
        if self.cfg["pa"] > 13:
            self.emit(self.poll_a())
        self.late = [lambda: a.wait_vm("H"), lambda: self.set_flag(sFL), lambda: self.ts("flag")]
        self.lateat = self.cfg["flate"]

    def poll_a(self):
        return [f"s_add_u32 s{sAB + 1}, s{sPH}, {FA}", (self.poll_load(sAB + 1), "poll")]

    def phi(self, src, dst, n, bg1=(), bg2=(), bg3=()):
        a = self.a
        t = TMP + 16 * (n & 1)
        u = t + 8
        for i in range(4):
            a(f"v_pk_mul_f32 {vr(t + 2 * i, 2)}, {vr(src + 2 * i, 2)}, {sp(cL2E)}")
        for i in range(4):
            a(f"v_pk_add_f32 {vr(u + 2 * i, 2)}, {vr(src + 2 * i, 2)}, {sp(cEPS)}")
        self.emit(bg1)
        for i in range(8):
            a(f"v_exp_f32 v{t + i}, v{t + i} clamp")
        self.emit(bg2)
        for i in range(8):
            a(f"v_max_f32 v{u + i}, s{cEPS}, v{u + i}")
        self.emit(bg3)
        for i in range(4):
            a(f"v_pk_add_f32 {vr(t + 2 * i, 2)}, {vr(t + 2 * i, 2)}, {vr(u + 2 * i, 2)}")
        for i in range(4):
            a(f"v_cvt_pk_bf16_f32 v{dst + i}, v{t + 2 * i}, v{t + 2 * i + 1}")

    def att_epilogue(self):
        a = self.a
        KA, VA, QA, LG = ACC, ACC + 32, ACC + 64, ACC + 96
        PK, PV, KV, ZZ, MM = 128, 144, 16, 168, 48
        G, GB, GO = 164, 165, 166
        c = self.cfg
        kb = lambda i, w=None: self.bg(c["kd"][i], c["km"][i], w)
        cv = lambda n: [f"v_cvt_pk_bf16_f32 v{PV + i}, v{VA + 2 * i}, v{VA + 2 * i + 1}" for i in range(4 * n, 4 * n + 4)]
        mk = lambda n: f"v_mfma_f32_32x32x16_bf16 {vr(KV, 16)}, {vr(PK + 4 * n)}, {vr(PV + 4 * n)}, {vr(KV, 16) if n else 0}"
        mz = lambda n: f"v_mfma_f32_32x32x16_bf16 {vr(ZZ, 16)}, {vr(PK + 4 * n)}, {vr(ONES)}, {vr(ZZ, 16) if n else 0}"
        gate = [f"v_mul_f32 v{G}, s{cNL2E}, v{LG}", f"v_exp_f32 v{G}, v{G}", f"v_add_f32 v{G}, 1.0, v{G}",
                f"v_rcp_f32 v{G}, v{G}", f"ds_write_b32 v{e2}, v{G}"]
        self.phi(KA, PK, 0, kb(0), kb(1, "e0"), cv(0))
        self.phi(KA + 8, PK + 4, 1, kb(2) + [mz(0)], kb(3, "e1"), cv(1))
        self.get_nonce()
        a(f"s_and_b32 s{sNO2}, s{sNON}, 0xbfff")
        self.phi(KA + 16, PK + 8, 2, [mk(0)] + gate[:2] + kb(4), [mz(1)] + gate[2:4] + kb(5), [mk(1)] + cv(2))
        self.phi(KA + 24, PK + 12, 3, [mz(2), gate[4]] + kb(6), [mk(2), f"v_mov_b32 v{vT16}, s{sNO2}"] + kb(7), cv(3))
        a(mz(3))
        a(mk(3))
        self.emit(kb(8))
        for h in range(2):
            for r in range(8 * h, 8 * h + 8):
                x, y = (KV + r, ZZ + r) if h == 0 else (ZZ + r, KV + r)
                a(f"v_cndmask_b32 v{MM + r}, v{x}, v{y}, {sp(cM16)}")
                if r % 4 == 3:
                    a(f"ds_write_b128 v{e0 + h}, {vr(MM + r - 3)} offset:{512 * ((r >> 2) & 1)}")
        a.wait_all(vm=False)
        a("s_barrier")
        a(f"ds_read_b128 {vr(64)}, v{e3}")
        a(f"ds_read_b128 {vr(68)}, v{e3} offset:4096")
        a(f"ds_read_b32 v72, v{e4}")
        a(f"ds_read_b32 v73, v{e4} offset:128")
        a(f"ds_read_b32 v{GB}, v{e2x}")
        a(f"ds_read_b32 v{GO}, v{e5}")
        a(f"v_pk_add_f32 {vr(64, 2)}, {vr(64, 2)}, {vr(68, 2)}")
        a(f"v_pk_add_f32 {vr(66, 2)}, {vr(66, 2)}, {vr(70, 2)}")
        a(f"v_add_f32 v72, v72, v73")
        a(f"v_cvt_pk_bf16_f32 v64, v64, v65")
        a(f"v_cvt_pk_bf16_f32 v65, v66, v67")
        a(f"v_cvt_pk_bf16_f32 v66, v72, v72")
        a(f"v_and_or_b32 v66, v66, s{cM16}, v{vT16}")
        a(f"buffer_store_dwordx3 {vr(64, 3)}, v{e6}, {srd(SWS)}, s{sKS} offen sc1", "KV")
        self.ts("pub")
        PQ = 128
        for n in range(4):
            self.phi(QA + 8 * n, PQ + 4 * n, n, self.bg(min(2, c["qd"][n])), self.bg([], c["qm"][n]),
                     self.bg(max(0, c["qd"][n] - 2)))
        a(f"v_sub_f32 v{GO}, 1.0, v{GO}")
        self.ts("phiq")
        P0, S = 16, 96
        ld = lambda p: (f"buffer_load_dwordx3 {vr(P0 + 4 * p, 3)}, v{e7 if p & 4 else e6}, {srd(SWS)}, "
                        f"s{sKV2 if p & 8 else sKV} offen offset:{KVP * (p & 3)} sc1")
        for p in range(16):
            a(ld(p))
        a(f"buffer_store_dword v{GO}, v{vOMa}, {srd(SWS)}, s{sH3} offen sc1", "O")
        self.emit(self.bg(c["n1"]))
        self.ts("kvld")
        for h in range(2):
            ps = range(8 * h, 8 * h + 8)
            chk = [f"v_xor_b32 v9, s{sNO2}, v{P0 + 4 * ps[0] + 2}"]
            chk += [f"v_bitop3_b32 v9, s{sNO2}, v{P0 + 4 * p + 2}, v9 bitop3:0xbe" for p in ps[1:]]
            chk += ["v_cmp_ne_u16 vcc, 0, v9"]
            self.spin(chk, [ld(p) for p in ps], "s_cbranch_vccz", "s_cbranch_vccnz")
            self.ts(f"kv{h}")
            for p in ps:
                w = P0 + 4 * p
                if p == 0:
                    self.emit([f"v_lshlrev_b32 v{S}, 16, v{w}", f"v_and_b32 v{S + 1}, s{cM16}, v{w}",
                               f"v_lshlrev_b32 v{S + 2}, 16, v{w + 1}", f"v_and_b32 v{S + 3}, s{cM16}, v{w + 1}",
                               f"v_and_b32 v{S + 4}, s{cM16}, v{w + 2}"])
                else:
                    for i in range(5):
                        a(f"v_dot2c_f32_bf16 v{S + i}, s{cONE if i & 1 or i == 4 else cD0}, v{w + (i >> 1)}")
                self.emit(self.bg(c["sd"][p], c["sm"][p]))
        self.emit(self.poll_a())
        a(f"v_cvt_pk_bf16_f32 v{S}, v{S}, v{S + 1}")
        a(f"v_cvt_pk_bf16_f32 v{S + 1}, v{S + 2}, v{S + 3}")
        a(f"v_cvt_pk_bf16_f32 v{S + 4}, v{S + 4}, v{S + 4}")
        a(f"ds_write_b64 v{f0}, {vr(S, 2)}")
        a("s_mov_b64 exec, 0xffff")
        a(f"ds_write_b16 v{f1}, v{S + 4}")
        a("s_mov_b64 exec, -1")
        self.ts("kvsum")
        a.wait_all(vm=False)
        a("s_barrier")
        F = 144
        a(f"ds_read_b128 {vr(F)}, v{f3}")
        a(f"ds_read_b128 {vr(F + 4)}, v{f3} offset:576")
        for n in range(4):
            rf, h = n >> 1, n & 1
            a(f"v_mfma_f32_32x32x16_bf16 {vr(16 + 16 * n, 16)}, {vr(F + 4 * h)}, {vr(PQ + 8 * rf + 4 * h)}, 0")
        for n in range(4):
            rf, h = n >> 1, n & 1
            d = 16 + 16 * n
            o = TMP + 4 * n
            a(f"v_add_f32 v{d + 8}, s{cEPS}, v{d + 8}")
            a(f"v_rcp_f32 v{d + 8}, v{d + 8}")
            a(f"v_mul_f32 v{d + 8}, v{d + 8}, v{GB if rf else G}")
            for i in range(4):
                a(f"v_pk_mul_f32 {vr(d + 2 * i, 2)}, {vr(d + 2 * i, 2)}, {vr(d + 8, 2)} op_sel_hi:[1,0]")
            for i in range(4):
                a(f"v_cvt_pk_bf16_f32 v{o + i}, v{d + 2 * i}, v{d + 2 * i + 1}")
            a(f"buffer_store_dwordx4 {vr(o)}, v{vL16}, {srd(SWS)}, s{sHB if rf else sHA} offen offset:{1024 * h} sc1", "O")
        self.ts("ostored")
        self.emit(self.bg(range(self.nb, c["apre"])))
        self.late = [lambda: a.wait_vm("O"), lambda: self.set_flag(sFL), lambda: self.ts("oflag")]
        self.lateat = c["alate"]

    def a_load(self, b, rf):
        a = self.a
        s = sA0 + rf
        tab, g, r = STEP[b]
        if r == 0 and rf == 0:
            a(f"s_bfe_u32 s{sT2}, s{tab}, {0x80000 + 8 * g:#x}")
            a(f"s_lshl_b32 s{sT2}, s{sT2}, 10")
            a(f"s_add_u32 s{sA0}, s{sT2}, s{sAO if tab == sTW else sAB}")
        if r == 0 and rf == 1:
            a(f"s_add_u32 s{sA1}, s{sA0}, {144 * K}")
        dst = ar(A_RING + 8 * (b % A_DEPTH) + 4 * rf)
        a(f"buffer_load_dwordx4 {dst}, v{vL16}, {srd(SWS)}, s{s} offen offset:{1024 * (r % 4)} sc1", f"A{b}")

    def phase2(self):
        a = self.a
        OM, BB = 80, 144
        c = self.cfg
        D, ins = c["depth"], c["ins"]
        gates = {16: (sPH, "bpoll") + tuple(c["gb"][self.role == "att"]), 28: (sPG, "opoll") + tuple(c["go"])}
        assert self.nm == NB_REG
        a(f"s_mul_i32 s{sT0}, s{sW}, {20 * K}")
        a(f"s_add_u32 s{sAB}, s{sAO}, s{sT0}")
        a(f"s_sub_u32 s{sAB}, s{sAB}, {112 * K}")
        if self.lateat == 0:
            self.emit(self.late)
        a.wait_vm("poll")
        self.ts("poll1")
        self.poll_check(sAB + 1)
        self.ts("hpoll")
        for b in range(D):
            self.a_load(b, 0)
            self.a_load(b, 1)
            if b + 1 == self.lateat:
                self.emit(self.late)
            for so, _, p, _ in gates.values():
                if p == b - D:
                    a(self.poll_load(so), "poll")
        nxa, open_ = [D, D], 16
        scale = lambda n: [f"v_pk_mul_f32 {vr(ACC + 16 * n + 2 * i, 2)}, {vr(ACC + 16 * n + 2 * i, 2)}, "
                           f"{vr(OM + 16 * (n >> 1) + 2 * i, 2)}" for i in range(8)]
        par = 0
        for b in range(36):
            if b in (0, 1, 4, 8, 12, 18, 24, 30):
                self.ts(f"b{b}")
            nxt = []
            if b < 35 and L_OF[b + 1] >= NB_REG:
                assert L_OF[b + 1] < self.nb
                a.wait_vm(f"B{L_OF[b + 1]}")
                nxt = self.b_reads(L_OF[b + 1], lambda o: vr(BB + 8 * ((b + 1) & 1) + o, 2))
            for n in range(4):
                rf, ct = n >> 1, n & 1
                d = vr(ACC + 16 * n, 16)
                af = ar(A_RING + 8 * (b % A_DEPTH) + 4 * rf)
                bf = ar(8 * L_OF[b] + 4 * ct) if L_OF[b] < NB_REG else vr(BB + 8 * (b & 1) + 4 * ct)
                assert b < nxa[rf]
                a(f"v_mfma_f32_32x32x16_bf16 {d}, {af}, {bf}, {d if b else 0}")
                if n < 2:
                    self.emit(nxt[2 * n:2 * n + 2])
                if n == 0 and open_ in gates and gates[open_][3] == b:
                    so, name = gates[open_][:2]
                    self.poll_check(so)
                    self.ts(name)
                    if open_ == 28:
                        a(f"buffer_load_dword v{vOMv}, v{vOMa}, {srd(SWS)}, s{sOM} offen sc1")
                    open_ = 28 if open_ == 16 else 36
                if ct == 1:
                    lim = min(b + D + 1, open_, nxa[0] + c["catch"]) if rf == 0 else nxa[0]
                    if lim - nxa[rf] > 1:
                        for x in range(nxa[0], lim - 1):
                            self.a_load(x, 0)
                            self.a_load(x, 1)
                        nxa = [lim - 1, lim - 1]
                    if nxa[rf] < lim:
                        self.a_load(nxa[rf], rf)
                        nxa[rf] += 1
                if n == 0 and b >= ins and self.nb < 36:
                    self.emit(self.bg([self.nb]))
                if (b, n) in ((27, 2), (27, 3), (28, 0), (28, 1)):
                    self.emit(scale((n + 2) & 3))
                if n == 3:
                    for so, _, p, _ in gates.values():
                        if p == b:
                            a(self.poll_load(so), "poll")
                if n == 2 and b == 24:
                    a(f"ds_write_b32 v{vOMw}, v{vOMv}", "om")
                if n >= 2 and b == 25:
                    a.wait_lg("om")
                    for q in range(4):
                        a(f"ds_read_b128 {vr(OM + 16 * rf * ct + 4 * q)}, v{vOMr} offset:{128 * ct + 32 * q}")
        self.ts("p2end")
        a(f"s_mov_b32 m0, s{sBA}")
        for r in range(64):
            a(f"ds_write_addtid_b32 v{ACC + r} offset:{256 * r}")
        a.wait_all(vm=False)
        a("s_barrier")
        R = 80
        for u in range(4):
            i, ct = u >> 1, u & 1
            for p in range(4):
                a(f"ds_read_b128 {vr(R + 16 * u + 4 * p)}, v{vRa} offset:{16384 * p + 4096 * ct + 1024 * i}")
        for u in range(4):
            i, ct = u >> 1, u & 1
            b = R + 16 * u
            for h in range(2):
                a(f"v_pk_add_f32 {vr(b + 2 * h, 2)}, {vr(b + 2 * h, 2)}, {vr(b + 4 + 2 * h, 2)}")
                a(f"v_pk_add_f32 {vr(b + 8 + 2 * h, 2)}, {vr(b + 8 + 2 * h, 2)}, {vr(b + 12 + 2 * h, 2)}")
            for h in range(2):
                a(f"v_pk_add_f32 {vr(b + 2 * h, 2)}, {vr(b + 2 * h, 2)}, {vr(b + 8 + 2 * h, 2)}")
            a(f"v_cvt_pk_bf16_f32 v{b}, v{b}, v{b + 1}")
            a(f"v_cvt_pk_bf16_f32 v{b + 1}, v{b + 2}, v{b + 3}")
            a(f"buffer_store_dwordx2 {vr(b, 2)}, v{vOa}, {srd(SOUT)}, s{sO1 if i else sO0} offen offset:{64 * ct}")
        if self.diag:
            self.ts("stored")
            a.wait_all()
            self.ts("end")
            a(f"s_memrealtime {sp(sTS + 6)}")
            self.ts_flush()
            for lane, r in ((60, sTS + 2), (61, sTS + 4), (62, sTS + 6), (63, sSPIN)):
                a(f"v_writelane_b32 v{vTS}, s{r}, {lane}")
            a(f"s_lshl2_add_u32 s{sT0}, s2, s{sW}")
            a(f"s_lshl_b32 s{sT0}, s{sT0}, 8")
            a(f"s_add_u32 s{sT0}, s{sT0}, {WS_TS}")
            a(f"buffer_store_dword v{vTS}, v{vOMa}, {srd(SWS)}, s{sT0} offen")
        a("s_endpgm")

    def build(self):
        a = self.a
        self.common()
        st = a.state()
        saved = {}
        for role in ("ffn", "att"):
            self.role, self.pitch = role, 3584 if role == "ffn" else 3072
            if role == "att":
                a.label("L_att")
                a.set_state(st)
            self.early(role)
            saved[role] = (a.state(), self.ts_pend)
            self.ts_pend = None
            a.raw(f"s_branch L_{role}_rest")
        for role in ("ffn", "att"):
            self.role, self.pitch = role, 3584 if role == "ffn" else 3072
            if role == "att":
                a.raw(".p2align 7")
            a.label(f"L_{role}_rest")
            state, self.ts_pend = saved[role]
            a.set_state(state)
            self.setup(role)
            self.main_loop(role)
            self.ffn_epilogue() if role == "ffn" else self.att_epilogue()
            self.phase2()
        a.label("L_exit")
        head = open("cdna_kernels/" + KNAME[:-7] + ".s.ref").read().split("; Override")[0]
        return (head + "; @launch grid=(256,1,1) block=(256,1,1) lds=163840\n"
                + '.amdgcn_target "amdgcn-amd-amdhsa--gfx950"\n.text\n'
                + f".globl {KNAME}\n.p2align 8\n.type {KNAME},@function\n{KNAME}:\n"
                + a.text() + "  s_endpgm\n"
                + f'.section .rodata,"a"\n.p2align 6\n.amdhsa_kernel {KNAME}\n'
                + "  .amdhsa_next_free_vgpr 512\n  .amdhsa_next_free_sgpr 102\n  .amdhsa_accum_offset 256\n"
                + "  .amdhsa_group_segment_fixed_size 0\n  .amdhsa_kernarg_size 80\n  .amdhsa_user_sgpr_count 2\n"
                + "  .amdhsa_user_sgpr_kernarg_segment_ptr 1\n  .amdhsa_system_sgpr_workgroup_id_x 1\n"
                + "  .amdhsa_float_denorm_mode_32 3\n.end_amdhsa_kernel\n")


if __name__ == "__main__":
    out = sys.argv[1]
    diag = len(sys.argv) > 2 and sys.argv[2] == "diag"
    cfg = json.loads(sys.argv[3]) if len(sys.argv) > 3 else None
    g = Gen2(diag, cfg)
    txt = g.build()
    open(out, "w").write(txt)
    if diag:
        json.dump(g.tsn, open(out + ".json", "w"))
    print("instructions", len(g.a.out), "nop states", g.a.nops)
```

```python
import sys, json
import gen_kernel as G0
G0.SWO, G0.SW, G0.SG, G0.SDBG, G0.SW2, G0.SWS, G0.SOUT = 8, 12, 16, 20, 24, 28, 32
from gen_kernel import *

SWA = 88
sK, sROT, sPO, sNO2, sEX, cD0 = 47, 48, 54, 55, 84, 86
sKS1, sKS2 = 49, 87
sKV, sKS, sFL, sPH, sPG, sJ, sOM, sO0, sO1, sAP, sKV2 = 3, 92, 93, 94, 95, 96, 97, 98, 99, 100, 101
vPX, vPW, vPB, vE, vD = 248, 249, 250, 251, 252
vOMa, vOMw, vOMr, vOMv, vRa, vOa, vAP, vT16 = range(206, 214)
e0, e1, e2, e2x, e3, e4, e5, e6, e7, f0, f1, f3 = range(116, 128)
ONES = 4
vW2 = vPX
sTA, sTB, sTW, sAO, sBW, sBO, sAB = sROT, 0, 1, sJ, sAP, sPO, 84
FA = WS_KVF - WS_HF
STEP = [(sTA, b >> 2, b & 3) for b in range(16)] + [(sTB, b // 3, b % 3) for b in range(12)] + \
       [(sTW, b >> 1, b & 1) for b in range(8)]
B_OF = [0, 1, 2, 3, 16, 17, 18, 28, 29] + list(range(4, 16)) + list(range(19, 28)) + list(range(30, 36))
L_OF = [B_OF.index(b) for b in range(36)]
KVP = 768


def lanes(n):
    if n == 64:
        return ["s_mov_b64 exec, -1"]
    if n < 32:
        return [f"s_mov_b64 exec, {(1 << n) - 1:#x}"]
    return ["s_mov_b32 exec_lo, -1", f"s_mov_b32 exec_hi, {(1 << (n - 32)) - 1:#x}"]


class Gen2(Gen):
    def __init__(self, diag=False, cfg=None):
        base = dict(cap=4, depth=8, opf=1, cpf=1, pipe=1, opoll=2, wopf="x", krot=6, brot=3, rev=1, xpar=1, mpf="p", tlb="x",
                    hmod="sc1", st6=5, st7=2, st7p=2, mv7=0,
                    fd=[1] * 14, fm=[0, 1, 2, 2, 2, 2, 2, 0, 0, 1, 1, 1, 1, 0],
                    fpre=36, apre=36, ins=2, fa=11, pa=12, flate=0, alate=8, catch=2, rx=0, map=1, lpf=[], fe=0, ae=0, aeb=0,
                    gb=[[2, 8], [-1, 7]], go=[12, 20],
                    kd=[1, 1, 1, 1, 0, 0, 0, 0, 0], km=[0, 0, 0, 2, 0, 0, 0, 0, 2],
                    qd=[2, 2, 1, 0], qm=[3, 2, 2, 2], n1=6,
                    sd=[1, 0] * 8, sm=[0, 1, 1, 1, 1, 1] + [0] * 10)
        base.update(cfg or {})
        super().__init__(diag, base)
        self.a.pipe = bool(self.cfg["pipe"])
        self.pre = []

    def ts0(self, name, reg):
        if self.diag:
            for r in self.tsn:
                self.tsn[r].append(name)
            self.pre.append((len(self.tsn["ffn"]) - 1, reg))
            self.a(f"s_memtime {sp(reg)}")

    def emit(self, items, tag=None):
        for x in items:
            if x == []:
                continue
            if callable(x):
                x()
            elif isinstance(x, tuple):
                self.a(*x)
            else:
                self.a(x, tag)

    def common(self):
        a = self.a
        a("s_cmpk_ge_u32 s2, 256")
        a("s_cbranch_scc1 L_exit")
        if self.diag:
            a(f"s_memrealtime {sp(sTS + 2)}")
            a(f"s_memtime {sp(sTS + 4)}")
        a("s_load_dwordx16 s[4:19], s[0:1], 0")
        a("s_load_dwordx4 s[20:23], s[0:1], 64")
        rx = self.cfg["rx"]
        self.rolebit, rb, cb = ((3, 0, 1), (0, 1, 2), (2, 0, 1), (1, 0, 2))[rx]
        self.emit([
            "v_lshrrev_b32 v4, 6, v0",
            f"v_and_b32 v{vL}, 63, v0",
            f"v_readfirstlane_b32 s{sW}, v4",
            f"v_lshrrev_b32 v4, 3, v{vL}",
            f"v_lshrrev_b32 v5, 4, v{vL}",
            f"v_and_b32 v6, 7, v{vL}",
            f"s_bfe_u32 s{sT0}, s2, {0x10000 + rb:#x}",
            f"s_lshr_b32 s{sT1}, s2, 5",
            f"s_lshl3_add_u32 s{sRB}, s{sT0}, s{sT1}",
            "v_xor_b32 v7, v5, v6",
            "v_lshlrev_b32 v7, 4, v7",
            f"s_bfe_u32 s{sT0}, s2, 0x20003",
            f"s_lshl1_add_u32 s{sK}, s{sT0}, s{sT1}",
            f"s_sub_u32 s{sK}, 0, s{sK}" if self.cfg["rev"] else [],
            f"s_and_b32 s{sK}, s{sK}, {self.cfg['krot']}"] + ([
            f"s_lshr_b32 s{sT2}, s2, {abs(cb - rb) if rx else 1}",
            f"s_xor_b32 s{sT2}, s{sT2}, s2",
            f"s_bfe_u32 s{sT2}, s{sT2}, {0x10000 + min(rb, cb):#x}",
            f"s_add_u32 s{sK}, s{sK}, s{sT2}"] if self.cfg["xpar"] else []) + [
            f"v_lshl_add_u32 v{vDX}, v4, 10, v7",
            f"v_xor_b32 v{vDX + 1}, 64, v{vDX}",
            f"s_lshl2_add_u32 s{sOX}, s{sRB}, s{sW}",
            f"s_lshl_b32 s{sOX}, s{sOX}, 8",
            f"s_add_u32 s{sOX}, s{sOX}, s{sK}",
            f"s_lshl_b32 s{sOX}, s{sOX}, 7",
            f"v_add_u32 v{vDX + 1}, 7168, v{vDX + 1}",
            f"v_add_u32 v{vDX + 2}, 14336, v{vDX}",
            f"s_lshl_b32 s{sMX}, s{sW}, 12",
            f"s_bfe_u32 s{sT0}, s2, {0x10000 + cb:#x}" if rx else f"s_and_b32 s{sT0}, s2, 6",
            f"s_bfe_u32 s{sCOL}, s2, {0x20003 if rx else 0x10004:#x}",
            f"v_add_u32 v{vDX + 3}, 14336, v{vDX + 1}",
            f"v_lshlrev_b32 v{vL16}, 4, v{vL}",
            f"s_lshl2_add_u32 s{sCOL}, s{sT0}, s{sCOL}" if rx else f"s_add_u32 s{sCOL}, s{sCOL}, s{sT0}",
            f"s_lshl2_add_u32 s{sOW}, s{sK}, s{sW}",
            f"s_bitcmp1_b32 s2, {self.rolebit}",
            "s_cbranch_scc1 L_att"])

    def code_prefetch(self, role):
        pc, end = f"L_pc_{role}", "L_att_rest" if role == "ffn" else "L_exit"
        first = f"L_{role}_rest"
        self.emit([f"s_getpc_b64 {sp(sT0)}", lambda: self.a.label(pc),
                   f"s_lshr_b32 s{sT3}, s2, 4",
                   f"s_lshl_b32 s{sT3}, s{sT3}, 11",
                   f"s_add_u32 s{sT3}, s{sT3}, {first}-{pc}",
                   "v_lshrrev_b32 v10, 4, v0",
                   "v_and_b32 v11, 3, v0",
                   "v_add_u32 v10, v10, v11",
                   f"v_lshl_add_u32 v10, v10, 7, s{sT3}",
                   f"v_min_u32 v10, {end}-{pc}, v10",
                   f"v_mov_b32 v11, s{sT1}",
                   f"v_add_co_u32 v10, vcc, s{sT0}, v10",
                   "v_addc_co_u32 v11, vcc, 0, v11, vcc",
                   "s_mov_b64 exec, 0xf",
                   (f"global_load_dword v{vD}, v[10:11], off", "PFc"),
                   "s_mov_b64 exec, -1"])

    def stage_items(self, role, s):
        sw = SW if role == "ffn" else SWA
        base = STAGE[s % 3]
        xs = [f"buffer_load_dwordx4 v{vDX + i}, {srd(SX)}, s{sOX} offen offset:{1024 * i} lds" for i in range(4)]
        n = 7 if role == "ffn" else 6
        ws = [f"buffer_load_dwordx4 v{vDW + m}, {srd(sw)}, s{sOW} offen offset:{1024 * (m % 4)} lds" for m in range(n)]
        step = [f"s_cmp_eq_u32 s{sK}, {7 - s}", f"s_cselect_b32 s{sKS1}, -7, 1"]
        slots = [[f"s_add_u32 m0, s{sMX}, {base}", xs[0]], [xs[1]] + step, [xs[2], f"s_lshl_b32 s{sKS2}, s{sKS1}, 7"],
                 [xs[3], f"s_add_u32 s{sOX}, s{sOX}, s{sKS2}"]]
        for m, t in enumerate(ws):
            pre = [f"s_add_u32 m0, s{sMW}, {base + 16384 + 1024 * m}"] if m in (0, 4) else []
            post = []
            if m == 1:
                post = [f"s_mul_i32 s{sKS1}, s{sKS1}, {64 * self.pitch}"]
            if m == n - 1:
                post = [f"s_add_u32 s{sOW}, s{sOW}, s{sKS1}"]
            slots.append(pre + [t] + post)
        return [[(x, f"S{s}") for x in sl] for sl in slots]

    def pf_b(self, where):
        if str(self.cfg["wopf"]) == str(where):
            return lanes(32) + [(f"buffer_load_dword v{vD + 2}, v{vPB}, {srd(SWO)}, s{sPO} offen", "PF")]
        return []

    def pf_chip(self, where):
        out = []
        if self.cfg["mpf"] == where:
            out += [f"s_lshl2_add_u32 s{sT2}, s2, s{sW}", f"s_mul_i32 s{sT3}, s{sT2}, {14 * 128}",
                    f"s_lshl_b32 s{sT2}, s{sT2}, 9", f"v_lshlrev_b32 v9, 7, v{vL}"] + lanes(14)
            out += [(f"buffer_load_dword v{vD + 1}, v9, {srd(SW2)}, s{sT3} offen", "PF")] + lanes(4)
            out += [(f"buffer_load_dword v{vD + 2}, v9, {srd(SWO)}, s{sT2} offen", "PF")]
        if self.cfg["tlb"] == where:
            out += ["s_mov_b64 exec, -1", f"s_lshl2_add_u32 s{sT2}, s2, s{sW}", f"s_lshl_b32 s{sT2}, s{sT2}, 7",
                    f"v_lshlrev_b32 v9, 21, v{vL}", f"s_mov_b32 s{SOUT + 2}, {2048 * 1024}",
                    f"s_mov_b32 s{SOUT + 3}, 0x20000"] + lanes(6)
            out += [(f"buffer_load_dword v{vPX}, v9, {srd(SWS)}, s{sT2} offen", "PF"), f"v_lshlrev_b32 v9, 20, v{vL}"]
            out += lanes(2) + [(f"buffer_load_dword v{vPW}, v9, {srd(SOUT)}, s{sT2} offen", "PF")]
        return out + ["s_mov_b64 exec, -1"] * bool(out)

    def early(self, role):
        a = self.a
        ffn = role == "ffn"
        sw, pitch = (SW, 3584) if ffn else (SWA, 3072)
        v8 = ["v_lshlrev_b32 v8, 2, v5", "v_and_b32 v8, 4, v8", "v_xor_b32 v8, v8, v6", "v_lshlrev_b32 v8, 4, v8"]
        if ffn:
            a(f"v_mul_u32_u24 v9, 9363, v{vL}")
            a(f"s_movk_i32 s{sT1}, 3136")
            a(f"v_add_u32 v11, 4096, v{vL16}")
        else:
            self.emit(v8 + [f"v_mul_u32_u24 v9, 3072, v4", f"v_add_u32 v9, v9, v8"])
        sal = [f"s_mul_i32 s{sOW}, s{sOW}, {16 * pitch}",
               f"s_mul_i32 s{sT0}, s{sCOL}, {448 if ffn else 128}",
               f"s_add_u32 s{sOW}, s{sOW}, s{sT0}",
               f"s_mul_i32 s{sMW}, s{sW}, {7168 if ffn else 6144}"]
        for m in range(7 if ffn else 6):
            if ffn:
                if m:
                    a(f"v_add_u32 v9, {64 * 9363}, v9")
                a(f"v_lshrrev_b32 v10, 18, v9")
                a(f"v_mad_u32_u24 v{vDW + m}, v10, s{sT1}, v{11 if m >= 4 else vL16}")
            else:
                off = (m & 1) * 8 * 3072 + (1024, 2048, 0)[m >> 1] - 1024 * (m % 4)
                a(f"v_add_u32 v{vDW + m}, {off}, v9")
            if sal:
                a(sal.pop(0))
        if self.diag:
            self.tsn[role].append("addr")
            a(f"s_memtime {sp(96)}")
        a.wait_all(vm=False)
        self.ts("karg")
        if ffn:
            a(f"s_mov_b64 {sp(SW2)}, s[14:15]")
        else:
            a(f"s_mov_b64 {sp(SWA)}, s[6:7]")
        for r, n in ((SX, 2048 * 1024), (sw, 512 * pitch)):
            a(f"s_mov_b32 s{r + 2}, {n}")
            a(f"s_mov_b32 s{r + 3}, 0x20000")
        for sl in self.stage_items(role, 0):
            self.emit(sl)
        if self.diag:
            a(f"v_writelane_b32 v{vTS}, s96, 0")
        self.ts("s0iss")
        if self.cfg["cpf"]:
            self.code_prefetch(role)
        if ffn:
            self.emit(v8)

    def setup(self, role):
        a = self.a
        ffn = role == "ffn"
        if not ffn:
            a(f"s_mov_b64 {sp(SW2)}, s[14:15]")
        self.emit([
            f"s_mov_b64 {sp(SOUT)}, s[18:19]",
            f"s_mov_b64 {sp(SWS)}, s[22:23]",
            f"s_lshr_b32 s{sRH}, s{sW}, 1",
            f"s_and_b32 s{sCH}, s{sW}, 1",
            f"v_and_b32 v10, 31, v{vL}",
            f"v_lshrrev_b32 v11, 5, v{vL}",
            f"v_bfe_u32 v12, v{vL}, 1, 3",
            "v_xor_b32 v12, v12, v11",
            "v_lshlrev_b32 v12, 4, v12",
            "v_lshl_add_u32 v12, v10, 7, v12",
            f"s_add_u32 s{sT0}, s{sMX}, {STAGE[0]}",
            f"s_xor_b32 s{sT1}, s{sMX}, 4096",
            f"s_add_u32 s{sT1}, s{sT1}, {STAGE[0]}"])
        for t in range(4):
            a(f"v_xor_b32 v13, {32 * t}, v12")
            a(f"v_add_u32 v{vXA + t}, s{sT0}, v13")
            a(f"v_add_u32 v{vXB + t}, s{sT1}, v13")
        self.emit([
            f"v_bfe_u32 v13, v{vL}, 2, 2",
            f"v_bfe_u32 v14, v{vL}, 4, 1",
            "v_lshlrev_b32 v14, 5, v14",
            f"v_and_b32 v15, 3, v{vL}",
            "v_lshl_add_u32 v14, v15, 3, v14",
            "v_lshl_add_u32 v15, v11, 3, v13"])
        if ffn:
            self.emit([
                "v_mul_u32_u24 v15, 448, v15",
                "v_add_u32 v15, v15, v14",
                f"v_add_u32 v{vW3}, {STAGE[0] + 16384 + 192}, v15",
                f"s_mul_i32 s{sT0}, s{sCH}, 320",
                f"s_add_u32 s{sT0}, s{sT0}, {STAGE[0] + 16384}",
                f"v_add_u32 v{vW}, s{sT0}, v15",
                f"s_lshl_b32 s{sT0}, s{sCH}, 7",
                f"s_add_u32 s{sT0}, s{sT0}, {STAGE[0] + 16384 + 128}",
                f"v_add_u32 v{vW2}, s{sT0}, v15"])
        else:
            self.emit([
                "v_lshl_add_u32 v15, v15, 7, v14",
                "v_lshrrev_b32 v9, 1, v13",
                f"v_xor_b32 v9, s{sCH}, v9",
                "v_lshl_add_u32 v15, v9, 6, v15",
                f"v_add_u32 v{vW}, {STAGE[0] + 16384}, v15",
                f"v_lshrrev_b32 v9, 2, v{vL}",
                "v_xor_b32 v9, v9, v5",
                "v_and_b32 v9, 1, v9",
                "v_lshlrev_b32 v9, 10, v9",
                "v_lshl_add_u32 v9, v11, 4, v9",
                f"v_add_u32 v{vW3}, {L_T0}, v9"])
            for r in range(TMP, TMP + 4):
                a(f"v_mov_b32 v{r}, 0")
            a(f"v_add_u32 v9, {L_T0 + 1024}, v{vL16}")
            a(f"ds_write_b128 v9, {vr(TMP)}", "zero")
        for s, n in ((SWS, WS_BYTES), (SW2, 1792 * 1024), (SWO, 512 * 1024), (SDBG, 256), (SG, 1024)):
            a(f"s_mov_b32 s{s + 2}, {n}")
            a(f"s_mov_b32 s{s + 3}, 0x20000")
        self.emit([
            f"v_mov_b32 v{vZ}, 0"])
        if ffn:
            self.emit([f"s_or_b32 s{sT0}, s2, s{sW}", f"s_cmp_eq_u32 s{sT0}, 0",
                       f"s_cselect_b32 s{sEX}, 1, 0", f"s_mov_b32 s{sEX + 1}, 0"])
        self.ts("setup")
        if not ffn:
            a(f"s_lshl_b32 s{sT0}, s{sK}, 7")
            a(f"v_add_u32 v9, s{sT0}, v{vL16}")
            a(f"v_and_b32 v9, 1023, v9")
            a(f"s_mov_b32 m0, {L_T0}")
            a(f"buffer_load_dwordx4 v9, {srd(SG)}, 0 offen lds", "S0")
        self.emit(self.pf_chip("0"))
        for x in self.stage_items(role, 1):
            self.emit(x)
        self.emit(self.pf_chip("p"))
        if self.cfg["lpf"]:
            self.emit([f"s_lshr_b32 s{sT2}, s2, 3", f"s_lshl2_add_u32 s{sT2}, s{sT2}, s{sW}"])
            if self.cfg["map"]:
                self.emit([f"s_and_b32 s{sT1}, s2, 1", f"s_lshl_b32 s{sT1}, s{sT1}, 9",
                           f"v_and_b32 v9, 3, v{vL}", f"v_lshl_add_u32 v9, v9, 7, s{sT1}",
                           f"v_lshrrev_b32 v{vPB}, 2, v{vL}", f"v_lshl_add_u32 v9, v{vPB}, 10, v9",
                           f"s_mul_i32 s{sT3}, s{sT2}, {14 * 1024}", f"v_add_u32 v{vPW}, s{sT3}, v9",
                           f"s_lshl_b32 s{sT3}, s{sT2}, 12", f"v_add_u32 v{vPB}, s{sT3}, v9"])
            else:
                self.emit([f"s_mul_i32 s{sT3}, s{sT2}, {112 * 128}", f"v_lshl_add_u32 v{vPW}, v{vL}, 7, s{sT3}",
                           f"s_lshl_b32 s{sT3}, s{sT2}, 12", f"v_lshl_add_u32 v{vPB}, v{vL}, 7, s{sT3}"])
        tail = self.pf_b("p")
        if ffn:
            tail += [f"s_mov_b64 exec, {sp(sEX)}", (f"buffer_load_dword v{vE}, v{vZ}, {srd(SWS)}, 0 offen sc1", "E")]
        self.emit(tail + ["s_mov_b64 exec, -1"] * bool(tail))

    def fillers(self, role):
        f = []
        for c, val in ((cM16, 0xFFFF0000), (cNL2E, 0xBFB8AA3B), (cONE, 0x3F800000), (cEPS, 0x358637BD),
                       (cL2E, 0x3FB8AA3B)):
            f += [f"s_mov_b32 s{c}, {val:#x}", f"s_mov_b32 s{c + 1}, {val:#x}"]
        f += [f"s_mov_b32 s{cD0}, 0x3f80",
              f"s_mov_b32 s{sSPIN}, {self.cfg['spin']}",
              f"s_mov_b32 s{SOUT + 2}, {2048 * 1024}",
              f"s_mov_b32 s{SOUT + 3}, 0x20000",
              ] + ([
              f"s_bfe_u32 s{sRT}, s2, 0x10002",
              f"s_lshr_b32 s{sT0}, s2, 4",
              f"s_lshl4_add_u32 s{sRT}, s{sRT}, s{sT0}",
              f"s_and_b32 s{sCC}, s2, 3",
              f"s_bfe_u32 s{sT0}, s2, 0x10003",
              f"s_lshl1_add_u32 s{sCC}, s{sCC}, s{sT0}"] if self.cfg["map"] == 2 else [
              f"s_bfe_u32 s{sRT}, s2, 0x20001",
              f"s_lshr_b32 s{sT0}, s2, 5",
              f"s_lshl3_add_u32 s{sRT}, s{sRT}, s{sT0}",
              f"s_and_b32 s{sCC}, s2, 1",
              f"s_bfe_u32 s{sT0}, s2, 0x20003",
              f"s_lshl2_add_u32 s{sCC}, s{sCC}, s{sT0}"] if self.cfg["map"] else [
              f"s_and_b32 s{sRT}, s2, 7",
              f"s_lshr_b32 s{sT0}, s2, 6",
              f"s_lshl2_add_u32 s{sRT}, s{sRT}, s{sT0}",
              f"s_bfe_u32 s{sCC}, s2, 0x30003"]) + [
              f"v_lshl_add_u32 v{vDB}, v4, 10, v8",
              f"v_add_u32 v{vDB + 1}, 7168, v{vDB}",
              f"s_mul_i32 s{sBW}, s{sW}, {448 * 1024}",
              f"s_lshl_b32 s{sT0}, s{sCC}, 7",
              f"s_add_u32 s{sBW}, s{sBW}, s{sT0}",
              f"s_lshl_b32 s{sBO}, s{sW}, 17",
              f"s_add_u32 s{sBO}, s{sBO}, s{sT0}",
              f"s_add_u32 s{sROT}, s{sRT}, s{sCC}",
              f"s_mul_i32 s{sROT}, s{sROT}, {-1 if self.cfg['rev'] else 1}",
              f"s_and_b32 s{sROT}, s{sROT}, {self.cfg['brot']}",
              f"s_lshl_b32 s{sT2}, s{sROT}, 3"]
        for tab, val in ((sTA, 0x180E0A00), (sTB, 0x15120704), (sTW, 0x06040200)):
            f += [f"s_mov_b32 s{sT0}, {val:#x}", f"s_mov_b32 s{sT1}, {val:#x}",
                  f"s_lshr_b64 {sp(sT0)}, {sp(sT0)}, s{sT2}", f"s_mov_b32 s{tab}, s{sT0}"]
        f += [
              f"s_lshl_b32 s{sBA}, s{sW}, 14",
              f"s_mul_i32 s{sBB}, s{sW}, {10 * K}",
              f"s_add_u32 s{sBB}, s{sBB}, {REGB}",
              "v_lshl_add_u32 v15, v11, 2, v13",
              "v_lshl_add_u32 v15, v15, 7, v14",
              "v_lshrrev_b32 v9, 1, v13",
              "v_lshl_add_u32 v15, v9, 6, v15",
              f"v_add_u32 v{vTA}, s{sBA}, v15",
              f"v_add_u32 v{vTB}, s{sBB}, v15",
              "v_xor_b32 v15, 64, v15",
              f"v_add_u32 v{vTA + 1}, s{sBA}, v15",
              f"v_add_u32 v{vTB + 1}, s{sBB}, v15",
              f"s_lshl1_add_u32 s{sT0}, s{sRB}, s{sRH}",
              f"s_lshl3_add_u32 s{sT0}, s{sT0}, s{sCOL}",
              f"s_lshl1_add_u32 s{sT0}, s{sT0}, s{sCH}",
              f"s_lshl_b32 s{sT0}, s{sT0}, 7",
              f"s_add_u32 s{sFL}, s{sT0}, {WS_HF if role == 'ffn' else WS_OF}",
              f"s_lshl2_add_u32 s{sT1}, s{sRB}, s{sW}",
              f"s_xor_b32 s{sT2}, s{sT1}, 1",
              f"s_mul_i32 s{sT1}, s{sT1}, {144 * K}",
              f"s_mul_i32 s{sT2}, s{sT2}, {144 * K}"]
        if role == "ffn":
            f += [f"s_mul_i32 s{sT0}, s{sCOL}, {14 * K}",
                  f"s_add_u32 s{sT0}, s{sT0}, {WS_A}",
                  f"s_add_u32 s{sH3}, s{sT1}, s{sT0}",
                  f"s_mul_i32 s{sT3}, s{sCH}, {10 * K}",
                  f"s_add_u32 s{sHA}, s{sH3}, s{sT3}",
                  f"s_add_u32 s{sHB}, s{sT2}, s{sT0}",
                  f"s_add_u32 s{sHB}, s{sHB}, s{sT3}",
                  f"s_add_u32 s{sH3}, s{sH3}, {6 * K}"]
        else:
            f += [f"s_lshl1_add_u32 s{sT0}, s{sCOL}, s{sCH}",
                  f"s_lshl_b32 s{sT3}, s{sT0}, 11",
                  f"s_add_u32 s{sT3}, s{sT3}, {WS_A + 112 * K}",
                  f"s_add_u32 s{sHA}, s{sT1}, s{sT3}",
                  f"s_add_u32 s{sHB}, s{sT2}, s{sT3}",
                  f"s_lshl_b32 s{sT0}, s{sT0}, 13",
                  f"s_lshl1_add_u32 s{sT1}, s{sRB}, s{sRH}",
                  f"s_lshl_b32 s{sT1}, s{sT1}, 8",
                  f"s_add_u32 s{sT0}, s{sT0}, s{sT1}",
                  f"s_add_u32 s{sH3}, s{sT0}, {WS_OMG}",
                  f"v_and_b32 v12, 15, v{vL}",
                  "v_lshlrev_b32 v13, 8, v11",
                  "v_lshl_add_u32 v9, v12, 4, v13",
                  f"s_lshl_b32 s{sT0}, s{sW}, 11",
                  f"s_add_u32 s{sT0}, s{sT0}, {L_SCR}",
                  f"v_add_u32 v13, s{sT0}, v9",
                  f"s_lshl_b32 s{sT0}, s{sW}, 6",
                  f"s_add_u32 s{sT0}, s{sT0}, {L_T1}",
                  f"v_lshl_add_u32 v14, v11, 4, s{sT0}",
                  f"v_cndmask_b32 v{e0}, v13, v14, {sp(cM16)}",
                  "v_add_u32 v13, 1024, v13",
                  "v_add_u32 v14, 32, v14",
                  f"v_cndmask_b32 v{e1}, v14, v13, {sp(cM16)}",
                  f"s_lshl_b32 s{sT0}, s{sW}, 7",
                  f"s_add_u32 s{sT0}, s{sT0}, {L_T1 + 1024}",
                  f"v_lshl_add_u32 v{e2}, v10, 2, s{sT0}",
                  f"v_xor_b32 v{e2x}, 128, v{e2}",
                  f"s_lshl1_add_u32 s{sT1}, s{sCH}, s{sRH}",
                  f"s_lshl_b32 s{sT0}, s{sT1}, 10",
                  f"s_add_u32 s{sT0}, s{sT0}, {L_SCR}",
                  f"v_add_u32 v{e3}, s{sT0}, v{vL16}",
                  f"s_lshl_b32 s{sT0}, s{sT1}, 5",
                  f"s_add_u32 s{sT0}, s{sT0}, {L_T1}",
                  f"v_bfe_u32 v15, v{vL}, 3, 1",
                  "v_lshlrev_b32 v13, 9, v15",
                  "v_lshl_add_u32 v13, v6, 2, v13",
                  f"v_add_u32 v{e4}, s{sT0}, v13",
                  f"s_lshl2_add_u32 s{sT2}, s{sCOL}, s{sT1}",
                  f"s_mul_i32 s{sKV}, s{sT2}, {16 * KVP}",
                  f"s_add_u32 s{sKV}, s{sKV}, {WS_KV}",
                  f"s_add_u32 s{sKV2}, s{sKV}, {8 * KVP}",
                  f"s_mul_i32 s{sKS}, s{sRB}, {KVP}",
                  f"s_add_u32 s{sKS}, s{sKS}, s{sKV}",
                  f"v_mul_u32_u24 v{e6}, 12, v{vL}",
                  f"v_add_u32 v{e7}, {4 * KVP}, v{e6}",
                  f"s_lshl_b32 s{sT3}, s{sRH}, 8",
                  f"s_add_u32 s{sT3}, s{sT3}, {L_T1 + 1024}",
                  f"v_lshl_add_u32 v{e5}, v{vL}, 2, s{sT3}",
                  f"s_mul_i32 s{sT0}, s{sT1}, 576",
                  f"s_add_u32 s{sT0}, s{sT0}, {L_T1 + 1536}",
                  "v_lshlrev_b32 v13, 4, v10",
                  "v_lshl_add_u32 v13, v11, 3, v13",
                  f"v_add_u32 v{f0}, s{sT0}, v13",
                  f"v_bfe_u32 v13, v{vL}, 2, 1",
                  "v_lshlrev_b32 v13, 4, v13",
                  "v_lshl_add_u32 v13, v15, 3, v13",
                  f"v_and_b32 v14, 3, v{vL}",
                  "v_lshl_add_u32 v13, v14, 1, v13",
                  f"s_add_u32 s{sT0}, s{sT0}, 512",
                  f"v_add_u32 v{f1}, s{sT0}, v13",
                  f"s_mul_i32 s{sT0}, s{sCH}, 1152",
                  f"s_add_u32 s{sT0}, s{sT0}, {L_T1 + 1536}",
                  "v_lshlrev_b32 v14, 4, v11",
                  "v_add_u32 v14, 512, v14",
                  f"v_cndmask_b32 v13, v9, v14, {sp(cM16)}",
                  f"v_add_u32 v{f3}, s{sT0}, v13"]
        f += [f"v_and_b32 v{vPA}, 3, v{vL}",
              f"v_lshlrev_b32 v{vPA}, 7, v{vPA}",
              f"s_lshl2_add_u32 s{sT0}, s{sRT}, s{sW}",
              f"s_lshl_b32 s{sT0}, s{sT0}, 9",
              f"s_add_u32 s{sPH}, s{sT0}, {WS_HF}",
              f"s_add_u32 s{sPG}, s{sT0}, {WS_OF}",
              f"s_mul_i32 s{sAO}, s{sRT}, {288 * K}",
              f"s_add_u32 s{sAO}, s{sAO}, {WS_A + 112 * K}",
              f"s_lshl_b32 s{sT0}, s{sW}, 13",
              f"s_add_u32 s{sAO}, s{sAO}, s{sT0}",
              f"s_lshl_b32 s{sT0}, s{sCC}, 7",
              f"s_lshl_b32 s{sO0}, s{sRT}, 16",
              f"s_add_u32 s{sO0}, s{sO0}, s{sT0}",
              f"s_add_u32 s{sO0}, s{sO0}, s{sBA}",
              f"s_add_u32 s{sO1}, s{sO0}, 8192",
              f"s_lshl_b32 s{sT0}, s{sW}, 15",
              f"s_lshl_b32 s{sT2}, s{sRT}, 8",
              f"s_add_u32 s{sT0}, s{sT0}, s{sT2}",
              f"s_add_u32 s{sOM}, s{sT0}, {WS_OMG}",
              f"s_lshl_b32 s{sT0}, s{sW}, 8",
              f"s_add_u32 s{sT0}, s{sT0}, {L_T0}",
              f"v_lshlrev_b32 v{vOMa}, 2, v{vL}",
              f"v_add_u32 v{vOMw}, s{sT0}, v{vOMa}",
              f"v_lshl_add_u32 v{vOMr}, v11, 4, s{sT0}",
              f"s_lshl_b32 s{sT0}, s{sRH}, 13",
              f"s_lshl_b32 s{sT1}, s{sCH}, 11",
              f"s_add_u32 s{sT0}, s{sT0}, s{sT1}",
              f"v_add_u32 v{vRa}, s{sT0}, v{vL16}",
              "v_and_b32 v9, 1, v4",
              "v_lshl_add_u32 v9, v9, 2, v5",
              "v_lshlrev_b32 v13, 3, v6",
              f"v_lshl_add_u32 v{vOa}, v9, 10, v13"]
        if role == "att":
            f += [f"v_mov_b32 v{ONES + i}, 0x3f803f80" for i in range(4)]
        return f

    def reads(self, role, t):
        out = super().reads(role, t)
        if role == "ffn":
            w = WF + 16 * (t & 1) + 8
            out[3] = [(f"ds_read_b64_tr_b16 {vr(w + 2 * j, 2)}, v{vW2} offset:{t * 7168 + j * 1792}", "r1") for j in range(2)]
        return out

    def b_dma(self, l):
        base, off = self.b_slot(l)
        tab, g, r = STEP[B_OF[l]]
        rs = srd(SWO if tab == sTW else SW2)
        pre = []
        if r == 0:
            pre = [f"s_bfe_u32 s{sT3}, s{tab}, {0x80000 + 8 * g:#x}", f"s_lshl_b32 s{sT3}, s{sT3}, 14",
                   f"s_add_u32 s{sOB}, s{sT3}, s{sBO if tab == sTW else sBW}"]
        return [pre + [f"s_add_u32 m0, {base}, {off}", f"buffer_load_dwordx4 v{vDB}, {rs}, s{sOB} offen lds"],
                [f"buffer_load_dwordx4 v{vDB + 1}, {rs}, s{sOB} offen offset:1024 lds",
                 f"s_add_u32 s{sOB}, s{sOB}, 16384"]]

    def b_pair(self, b):
        assert b == self.nb and (b < NB_REG or b - NB_REG < self.nm), (b, self.nb, self.nm)
        self.nb += 1
        pre = [lambda: self.a.wait_lg(f"M{b - NB_REG}")] if b >= NB_REG else []
        s0, s1 = [[(x, f"B{b}") for x in sl] for sl in self.b_dma(b)]
        return [pre + s0, s1]

    def move_pair(self, b):
        assert b == self.nm and b < self.nb, (b, self.nb, self.nm)
        self.nm += 1
        r = [(x, f"M{b}") for x in self.b_reads(b, lambda o: ar(8 * b + o, 2))]
        return [[lambda: self.a.wait_vm(f"B{b}")] + r[:2], r[2:]]

    def stage(self, role, s):
        a = self.a
        plan = {(t, g): [] for t in range(4) for g in range(7)}
        for t in range(3):
            for g, grp in enumerate(self.reads(role, t + 1)):
                plan[t, g] += grp
        plan[3, 1] += [lambda: a.wait_vm(f"S{s + 1}"), "s_barrier"]
        if s < 7:
            for g, grp in enumerate(self.reads(role, 0)):
                plan[3, g + 1] += grp
        pos = [(t, g) for t in range(3) for g in (1, 3, 5, 6)] + [(3, g) for g in range(2, 6)]
        spread = lambda sl, n: [sl[i * len(sl) // n] if (i + 1) * len(sl) // n > i * len(sl) // n else [] for i in range(n)]
        pairs = lambda k: [sl for b in range(self.nb, self.nb + k) for sl in self.b_pair(b)]
        if s < 6:
            slots = self.stage_items(role, s + 2)
        elif s == 6:
            slots = spread(pairs(self.cfg["st6"]), 16)
        else:
            slots = spread(pairs(self.cfg["st7"]), 12) + pairs(self.cfg["st7p"])
        assert len(slots) <= len(pos)
        for p, sl in zip(pos, slots):
            pre = [x for x in sl if isinstance(x, tuple) and x[0].startswith("s_add_u32 m0")]
            at = 2 if p == (3, 1) else 0
            plan[p][at:at] = pre
            plan[p] += [x for x in sl if x not in pre]
        if s < 7:
            d = DELTA[s % 3] & 0xFFFFFFFF
            add = lambda r: f"v_add_u32 v{r}, {d:#x}, v{r}"
            plan[0, 0] += [add(vXA)]
            plan[0, 2] += [add(vXB)]
            plan[0, 4] += [add(vXA + 1), add(vXB + 1)]
            plan[1, 4] += [add(vXA + 2), add(vXB + 2)]
            plan[2, 4] += [add(vXA + 3), add(vXB + 3)]
            plan[2, 5] += [add(vW)] + [add(vW2)] * (role == "ffn")
            plan[2, 6] += [add(vW3) if role == "ffn" else f"v_add_u32 v{vW3}, 128, v{vW3}"]
        pf = self.pf_b(s)
        for i, at in enumerate(self.cfg["lpf"]):
            if at == s and i < 2:
                pf += [f"v_add_u32 v{vPW}, 7168, v{vPW}"] * i + lanes(56)
                pf += [(f"buffer_load_dword v{vD + 1}, v{vPW}, {srd(SW2)}, 0 offen", "PF")]
            if at == s and i == 2:
                pf += lanes(16 if self.cfg["map"] else 32)
                pf += [(f"buffer_load_dword v{vD + 2}, v{vPB}, {srd(SWO)}, 0 offen", "PF")]
        if pf:
            plan[3, 6 if role == "ffn" else 5] += pf + ["s_mov_b64 exec, -1"]
        if s == 2 and role == "ffn":
            plan[1, 0] += [f"v_add_u32 v{vE}, 1, v{vE}", f"v_max_u32 v{vE}, 1, v{vE}"]
            plan[1, 2] += [f"s_mov_b64 exec, {sp(sEX)}",
                           (f"buffer_store_dword v{vE}, v{vZ}, {srd(SDBG)}, 0 offen sc1", "E"),
                           (f"buffer_store_dword v{vE}, v{vZ}, {srd(SWS)}, 0 offen sc1", "E"),
                           "s_mov_b64 exec, -1"]
        if s == 6:
            plan[0, 0] += [(f"buffer_load_dword v{vNO}, v{vZ}, {srd(SDBG)}, 0 offen sc1", "nonce")]
        if s == 7:
            mv = [x for b in range(self.cfg.get("mv7", 6)) for x in self.move_pair(b)]
            mpos = [(t, g) for t in range(3) for g in (5, 6)][self.cfg.get("mv7skip", 0):] + [(3, g) for g in range(7)]
            while mv:
                for p in mpos:
                    if mv:
                        plan[p] += mv.pop(0)
                mpos = mpos[-7:]
        for t in range(4):
            a.lg = self.retag(self.retag(a.lg, "r0", "o0"), "r1", "o1")
            if t == 3:
                a.wait_lg("o0", "o1")
            for g, m in enumerate(self.mfmas(role, t)):
                if g == 0:
                    a.wait_lg("o0")
                if g == 4:
                    a.wait_lg("o1")
                if s == 0 and t == 0:
                    m = m.rsplit(",", 1)[0] + ", 0"
                a(m)
                self.emit(plan[t, g])
                cap = self.cfg["cap"] - (2 if role == "att" and g == 6 else 0)
                room = cap - len([x for x in plan[t, g] if not callable(x)])
                while room > 0 and self.fill and (s or t):
                    a(self.fill.pop(0))
                    room -= 1

    def main_loop(self, role):
        a = self.a
        self.fill = self.fillers(role)
        self.nb = self.nm = 0
        self.started = False
        for _ in range(self.cfg.get("nsetup", 0)):
            a(self.fill.pop(0))
        self.ts("issued")
        a.wait_lg("zero")
        a.wait_vm("S0")
        a("s_barrier")
        self.ts("s0rdy")
        for grp in self.reads(role, 0):
            self.emit(grp)
        for s in range(8):
            if s == 6:
                assert not self.fill, len(self.fill)
            self.stage(role, s)
            if s in self.cfg.get("tss", (1, 3, 5)):
                self.ts(f"st{s}")
        self.ts("loopend")

    def spin(self, check, reload, branch_ok, branch_retry):
        a = self.a
        done, retry = self.lab("ok"), self.lab("retry")
        for x in check:
            a(x)
        a.raw(f"{branch_ok} {done}")
        a.label(retry)
        a.raw(f"s_sub_u32 s{sSPIN}, s{sSPIN}, 1")
        a.raw(f"s_cmp_lt_i32 s{sSPIN}, 0")
        a.raw(f"s_cbranch_scc1 {done}")
        for x in [reload] if isinstance(reload, str) else reload:
            a.raw(x)
        a.raw("s_waitcnt vmcnt(0)")
        for x in check:
            a.raw(x)
        a.raw(f"{branch_retry} {retry}")
        a.label(done)

    def bg(self, dmas=(), moves=(), where=None):
        out = []
        if isinstance(dmas, int):
            dmas = range(self.nb, min(36, self.nb + dmas))
        if isinstance(moves, int):
            moves = range(self.nm, min(NB_REG, self.nm + moves))
        for b in dmas:
            out += sum(self.b_pair(b), [])
        if where is not None:
            pf = self.pf_b(where)
            out += pf + ["s_mov_b64 exec, -1"] * bool(pf)
        for b in moves:
            out += sum(self.move_pair(b), [])
        return out

    def ffn_epilogue(self):
        a = self.a
        fd, fm = self.cfg["fd"], self.cfg["fm"]
        pend = []
        for n in range(14):
            k, half = n >> 1, n & 1
            src = ACC + 16 * k + 8 * half
            t = TMP + 8 * (n & 1)
            o = TMP + 16 + 4 * (n % 3)
            if n and n % 4 == 0:
                self.ts(f"silu{n}")
            self.emit(self.bg(min(1, fd[n])))
            for i in range(4):
                a(f"v_pk_mul_f32 {vr(t + 2 * i, 2)}, {vr(src + 2 * i, 2)}, {sp(cNL2E)}")
            for i in range(8):
                a(f"v_exp_f32 v{t + i}, v{t + i}")
            for i in range(4):
                a(f"v_pk_add_f32 {vr(t + 2 * i, 2)}, {vr(t + 2 * i, 2)}, {sp(cONE)}")
            self.emit(self.bg(max(0, fd[n] - 1), fm[n]))
            for i in range(8):
                a(f"v_rcp_f32 v{t + i}, v{t + i}")
            for i in range(4):
                a(f"v_pk_mul_f32 {vr(t + 2 * i, 2)}, {vr(t + 2 * i, 2)}, {vr(src + 2 * i, 2)}")
            for i in range(4):
                a(f"v_cvt_pk_bf16_f32 v{o + i}, v{t + 2 * i}, v{t + 2 * i + 1}")
            if n == 8:
                a(f"s_mul_i32 s{sT0}, s{sCH}, -6144")
                a(f"s_add_u32 s{sT0}, s{sT0}, 4096")
                a(f"s_add_u32 s{sHA}, s{sHA}, s{sT0}")
                a(f"s_add_u32 s{sHB}, s{sHB}, s{sT0}")
            so = sH3 if k == 6 else (sHB if k & 1 else sHA)
            off = 1024 * half + (2048 if k in (2, 3) else 0)
            pend.append(f"buffer_store_dwordx4 {vr(o)}, v{vL16}, {srd(SWS)}, s{so} offen offset:{off} {self.cfg['hmod']}")
            if n:
                self.emit(pend, "Ha" if n < 8 else "H")
                pend = []
            if n == 6:
                self.get_nonce()
            if n == self.cfg["fa"]:
                a(f"s_add_u32 s{sT0}, s{sFL}, {FA}")
                a.wait_vm("Ha")
                self.set_flag(sT0)
                self.ts("flaga")
            if n == self.cfg["pa"]:
                self.emit(self.poll_a())
        self.ts("pub")
        if self.cfg["fe"]:
            self.emit(self.bg(self.cfg["fe"] - 1))
            self.p2_start(True)
        self.emit(self.bg(range(self.nb, min(self.cfg["fpre"], self.nm + NB_REG))))
        self.emit(self.bg([], range(self.nm, NB_REG)))
        self.emit(self.bg(range(self.nb, self.cfg["fpre"])))
        if self.cfg["pa"] > 13:
            self.emit(self.poll_a())
        self.late = [lambda: a.wait_vm("H"), lambda: self.set_flag(sFL), lambda: self.ts("flag")]
        self.lateat = self.cfg["flate"]

    def poll_a(self):
        return [f"s_add_u32 s{sAB + 1}, s{sPH}, {FA}", (self.poll_load(sAB + 1), "poll")]

    def phi(self, src, dst, n, bg1=(), bg2=(), bg3=()):
        a = self.a
        t = TMP + 16 * (n & 1)
        u = t + 8
        for i in range(4):
            a(f"v_pk_mul_f32 {vr(t + 2 * i, 2)}, {vr(src + 2 * i, 2)}, {sp(cL2E)}")
        for i in range(4):
            a(f"v_pk_add_f32 {vr(u + 2 * i, 2)}, {vr(src + 2 * i, 2)}, {sp(cEPS)}")
        self.emit(bg1)
        for i in range(8):
            a(f"v_exp_f32 v{t + i}, v{t + i} clamp")
        self.emit(bg2)
        for i in range(8):
            a(f"v_max_f32 v{u + i}, s{cEPS}, v{u + i}")
        self.emit(bg3)
        for i in range(4):
            a(f"v_pk_add_f32 {vr(t + 2 * i, 2)}, {vr(t + 2 * i, 2)}, {vr(u + 2 * i, 2)}")
        for i in range(4):
            a(f"v_cvt_pk_bf16_f32 v{dst + i}, v{t + 2 * i}, v{t + 2 * i + 1}")

    def att_epilogue(self):
        a = self.a
        KA, VA, QA, LG = ACC, ACC + 32, ACC + 64, ACC + 96
        PK, PV, KV, ZZ, MM = 128, 144, 16, 168, 48
        G, GB, GO = 164, 165, 166
        c = self.cfg
        kb = lambda i, w=None: self.bg(c["kd"][i], c["km"][i], w)
        cv = lambda n: [f"v_cvt_pk_bf16_f32 v{PV + i}, v{VA + 2 * i}, v{VA + 2 * i + 1}" for i in range(4 * n, 4 * n + 4)]
        mk = lambda n: f"v_mfma_f32_32x32x16_bf16 {vr(KV, 16)}, {vr(PK + 4 * n)}, {vr(PV + 4 * n)}, {vr(KV, 16) if n else 0}"
        mz = lambda n: f"v_mfma_f32_32x32x16_bf16 {vr(ZZ, 16)}, {vr(PK + 4 * n)}, {vr(ONES)}, {vr(ZZ, 16) if n else 0}"
        gate = [f"v_mul_f32 v{G}, s{cNL2E}, v{LG}", f"v_exp_f32 v{G}, v{G}", f"v_add_f32 v{G}, 1.0, v{G}",
                f"v_rcp_f32 v{G}, v{G}", f"ds_write_b32 v{e2}, v{G}"]
        self.phi(KA, PK, 0, kb(0), kb(1, "e0"), cv(0))
        self.phi(KA + 8, PK + 4, 1, kb(2) + [mz(0)], kb(3, "e1"), cv(1))
        self.get_nonce()
        a(f"s_and_b32 s{sNO2}, s{sNON}, 0xbfff")
        self.phi(KA + 16, PK + 8, 2, [mk(0)] + gate[:2] + kb(4), [mz(1)] + gate[2:4] + kb(5), [mk(1)] + cv(2))
        self.phi(KA + 24, PK + 12, 3, [mz(2), gate[4]] + kb(6), [mk(2), f"v_mov_b32 v{vT16}, s{sNO2}"] + kb(7), cv(3))
        a(mz(3))
        a(mk(3))
        self.emit(kb(8))
        for h in range(2):
            for r in range(8 * h, 8 * h + 8):
                x, y = (KV + r, ZZ + r) if h == 0 else (ZZ + r, KV + r)
                a(f"v_cndmask_b32 v{MM + r}, v{x}, v{y}, {sp(cM16)}")
                if r % 4 == 3:
                    a(f"ds_write_b128 v{e0 + h}, {vr(MM + r - 3)} offset:{512 * ((r >> 2) & 1)}")
        a.wait_all(vm=False)
        a("s_barrier")
        a(f"ds_read_b128 {vr(64)}, v{e3}")
        a(f"ds_read_b128 {vr(68)}, v{e3} offset:4096")
        a(f"ds_read_b32 v72, v{e4}")
        a(f"ds_read_b32 v73, v{e4} offset:128")
        a(f"ds_read_b32 v{GB}, v{e2x}")
        a(f"ds_read_b32 v{GO}, v{e5}")
        a(f"v_pk_add_f32 {vr(64, 2)}, {vr(64, 2)}, {vr(68, 2)}")
        a(f"v_pk_add_f32 {vr(66, 2)}, {vr(66, 2)}, {vr(70, 2)}")
        a(f"v_add_f32 v72, v72, v73")
        a(f"v_cvt_pk_bf16_f32 v64, v64, v65")
        a(f"v_cvt_pk_bf16_f32 v65, v66, v67")
        a(f"v_cvt_pk_bf16_f32 v66, v72, v72")
        a(f"v_and_or_b32 v66, v66, s{cM16}, v{vT16}")
        a(f"buffer_store_dwordx3 {vr(64, 3)}, v{e6}, {srd(SWS)}, s{sKS} offen sc1", "KV")
        self.ts("pub")
        PQ = 128
        for n in range(4):
            self.phi(QA + 8 * n, PQ + 4 * n, n, self.bg(min(2, c["qd"][n])), self.bg([], c["qm"][n]),
                     self.bg(max(0, c["qd"][n] - 2)))
        a(f"v_sub_f32 v{GO}, 1.0, v{GO}")
        self.ts("phiq")
        P0, S = 16, 96
        ld = lambda p: (f"buffer_load_dwordx3 {vr(P0 + 4 * p, 3)}, v{e7 if p & 4 else e6}, {srd(SWS)}, "
                        f"s{sKV2 if p & 8 else sKV} offen offset:{KVP * (p & 3)} sc1")
        for p in range(16):
            a(ld(p))
        a(f"buffer_store_dword v{GO}, v{vOMa}, {srd(SWS)}, s{sH3} offen sc1", "O")
        self.emit(self.bg(c["n1"]))
        self.ts("kvld")
        for h in range(2):
            ps = range(8 * h, 8 * h + 8)
            chk = [f"v_xor_b32 v9, s{sNO2}, v{P0 + 4 * ps[0] + 2}"]
            chk += [f"v_bitop3_b32 v9, s{sNO2}, v{P0 + 4 * p + 2}, v9 bitop3:0xbe" for p in ps[1:]]
            chk += ["v_cmp_ne_u16 vcc, 0, v9"]
            self.spin(chk, [ld(p) for p in ps], "s_cbranch_vccz", "s_cbranch_vccnz")
            self.ts(f"kv{h}")
            if c["ae"] == 1 + h:
                self.emit(self.poll_a())
            for p in ps:
                w = P0 + 4 * p
                if p == 0:
                    self.emit([f"v_lshlrev_b32 v{S}, 16, v{w}", f"v_and_b32 v{S + 1}, s{cM16}, v{w}",
                               f"v_lshlrev_b32 v{S + 2}, 16, v{w + 1}", f"v_and_b32 v{S + 3}, s{cM16}, v{w + 1}",
                               f"v_and_b32 v{S + 4}, s{cM16}, v{w + 2}"])
                else:
                    for i in range(5):
                        a(f"v_dot2c_f32_bf16 v{S + i}, s{cONE if i & 1 or i == 4 else cD0}, v{w + (i >> 1)}")
                self.emit(self.bg(c["sd"][p], c["sm"][p]))
        if c["ae"] in (0, 3):
            self.emit(self.poll_a())
        a(f"v_cvt_pk_bf16_f32 v{S}, v{S}, v{S + 1}")
        a(f"v_cvt_pk_bf16_f32 v{S + 1}, v{S + 2}, v{S + 3}")
        a(f"v_cvt_pk_bf16_f32 v{S + 4}, v{S + 4}, v{S + 4}")
        a(f"ds_write_b64 v{f0}, {vr(S, 2)}")
        a("s_mov_b64 exec, 0xffff")
        a(f"ds_write_b16 v{f1}, v{S + 4}")
        a("s_mov_b64 exec, -1")
        self.ts("kvsum")
        if c["ae"] and c["aeb"]:
            self.p2_start(True)
        a.wait_all(vm=False)
        a("s_barrier")
        F = 144
        a(f"ds_read_b128 {vr(F)}, v{f3}")
        a(f"ds_read_b128 {vr(F + 4)}, v{f3} offset:576")
        for n in range(4):
            rf, h = n >> 1, n & 1
            a(f"v_mfma_f32_32x32x16_bf16 {vr(16 + 16 * n, 16)}, {vr(F + 4 * h)}, {vr(PQ + 8 * rf + 4 * h)}, 0")
        if c["ae"] and not c["aeb"]:
            self.p2_start(True)
        for n in range(4):
            rf, h = n >> 1, n & 1
            d = 16 + 16 * n
            o = TMP + 4 * n
            a(f"v_add_f32 v{d + 8}, s{cEPS}, v{d + 8}")
            a(f"v_rcp_f32 v{d + 8}, v{d + 8}")
            a(f"v_mul_f32 v{d + 8}, v{d + 8}, v{GB if rf else G}")
            for i in range(4):
                a(f"v_pk_mul_f32 {vr(d + 2 * i, 2)}, {vr(d + 2 * i, 2)}, {vr(d + 8, 2)} op_sel_hi:[1,0]")
            for i in range(4):
                a(f"v_cvt_pk_bf16_f32 v{o + i}, v{d + 2 * i}, v{d + 2 * i + 1}")
            a(f"buffer_store_dwordx4 {vr(o)}, v{vL16}, {srd(SWS)}, s{sHB if rf else sHA} offen offset:{1024 * h} {self.cfg['hmod']}", "O")
        self.ts("ostored")
        self.emit(self.bg(range(self.nb, c["apre"])))
        self.late = [lambda: a.wait_vm("O"), lambda: self.set_flag(sFL), lambda: self.ts("oflag")]
        self.lateat = c["alate"]

    def a_load(self, b, rf):
        a = self.a
        s = sA0 + rf
        tab, g, r = STEP[b]
        if r == 0 and rf == 0:
            a(f"s_bfe_u32 s{sT2}, s{tab}, {0x80000 + 8 * g:#x}")
            a(f"s_lshl_b32 s{sT2}, s{sT2}, 10")
            a(f"s_add_u32 s{sA0}, s{sT2}, s{sAO if tab == sTW else sAB}")
        if r == 0 and rf == 1:
            a(f"s_add_u32 s{sA1}, s{sA0}, {144 * K}")
        dst = ar(A_RING + 8 * (b % A_DEPTH) + 4 * rf)
        a(f"buffer_load_dwordx4 {dst}, v{vL16}, {srd(SWS)}, s{s} offen offset:{1024 * (r % 4)} sc1", f"A{b}")

    def p2_start(self, early=False):
        a = self.a
        a(f"s_mul_i32 s{sT0}, s{sW}, {20 * K}")
        a(f"s_add_u32 s{sAB}, s{sAO}, s{sT0}")
        a(f"s_sub_u32 s{sAB}, s{sAB}, {112 * K}")
        if not early and self.lateat == 0:
            self.emit(self.late)
        a.wait_vm("poll")
        self.ts("poll1")
        self.poll_check(sAB + 1)
        self.ts("hpoll")
        for b in range(self.cfg["depth"]):
            self.a_load(b, 0)
            self.a_load(b, 1)
            if not early and b + 1 == self.lateat:
                self.emit(self.late)
        self.started = True

    def phase2(self):
        a = self.a
        OM, BB = 80, 144
        c = self.cfg
        D, ins = c["depth"], c["ins"]
        gates = {16: (sPH, "bpoll") + tuple(c["gb"][self.role == "att"]), 28: (sPG, "opoll") + tuple(c["go"])}
        assert self.nm == NB_REG
        if not self.started:
            self.p2_start()
        elif self.lateat == 0:
            self.emit(self.late)
        for so, _, p, _ in gates.values():
            if p < 0:
                a(self.poll_load(so), "poll")
        nxa, open_ = [D, D], 16
        scale = lambda n: [f"v_pk_mul_f32 {vr(ACC + 16 * n + 2 * i, 2)}, {vr(ACC + 16 * n + 2 * i, 2)}, "
                           f"{vr(OM + 16 * (n >> 1) + 2 * i, 2)}" for i in range(8)]
        par = 0
        for b in range(36):
            if b in (0, 1, 4, 8, 12, 18, 24, 30):
                self.ts(f"b{b}")
            nxt = []
            if b < 35 and L_OF[b + 1] >= NB_REG:
                assert L_OF[b + 1] < self.nb
                a.wait_vm(f"B{L_OF[b + 1]}")
                nxt = self.b_reads(L_OF[b + 1], lambda o: vr(BB + 8 * ((b + 1) & 1) + o, 2))
            for n in range(4):
                rf, ct = n >> 1, n & 1
                d = vr(ACC + 16 * n, 16)
                af = ar(A_RING + 8 * (b % A_DEPTH) + 4 * rf)
                bf = ar(8 * L_OF[b] + 4 * ct) if L_OF[b] < NB_REG else vr(BB + 8 * (b & 1) + 4 * ct)
                assert b < nxa[rf]
                a(f"v_mfma_f32_32x32x16_bf16 {d}, {af}, {bf}, {d if b else 0}")
                if n < 2:
                    self.emit(nxt[2 * n:2 * n + 2])
                if n == 0 and open_ in gates and gates[open_][3] == b:
                    so, name = gates[open_][:2]
                    self.poll_check(so)
                    self.ts(name)
                    if open_ == 28:
                        a(f"buffer_load_dword v{vOMv}, v{vOMa}, {srd(SWS)}, s{sOM} offen sc1")
                    open_ = 28 if open_ == 16 else 36
                if ct == 1:
                    lim = min(b + D + 1, open_, nxa[0] + c["catch"]) if rf == 0 else nxa[0]
                    if lim - nxa[rf] > 1:
                        for x in range(nxa[0], lim - 1):
                            self.a_load(x, 0)
                            self.a_load(x, 1)
                        nxa = [lim - 1, lim - 1]
                    if nxa[rf] < lim:
                        self.a_load(nxa[rf], rf)
                        nxa[rf] += 1
                if n == 1 and self.lateat == D + 1 + b:
                    self.emit(self.late)
                if n == 0 and b >= ins and self.nb < 36:
                    self.emit(self.bg([self.nb]))
                if (b, n) in ((27, 2), (27, 3), (28, 0), (28, 1)):
                    self.emit(scale((n + 2) & 3))
                if n == 3:
                    for so, _, p, _ in gates.values():
                        if p == b:
                            a(self.poll_load(so), "poll")
                if n == 2 and b == 24:
                    a(f"ds_write_b32 v{vOMw}, v{vOMv}", "om")
                if n >= 2 and b == 25:
                    a.wait_lg("om")
                    for q in range(4):
                        a(f"ds_read_b128 {vr(OM + 16 * rf * ct + 4 * q)}, v{vOMr} offset:{128 * ct + 32 * q}")
        self.ts("p2end")
        a(f"s_mov_b32 m0, s{sBA}")
        for r in range(64):
            a(f"ds_write_addtid_b32 v{ACC + r} offset:{256 * r}")
        a.wait_all(vm=False)
        a("s_barrier")
        R = 80
        for u in range(4):
            i, ct = u >> 1, u & 1
            for p in range(4):
                a(f"ds_read_b128 {vr(R + 16 * u + 4 * p)}, v{vRa} offset:{16384 * p + 4096 * ct + 1024 * i}")
        for u in range(4):
            i, ct = u >> 1, u & 1
            b = R + 16 * u
            for h in range(2):
                a(f"v_pk_add_f32 {vr(b + 2 * h, 2)}, {vr(b + 2 * h, 2)}, {vr(b + 4 + 2 * h, 2)}")
                a(f"v_pk_add_f32 {vr(b + 8 + 2 * h, 2)}, {vr(b + 8 + 2 * h, 2)}, {vr(b + 12 + 2 * h, 2)}")
            for h in range(2):
                a(f"v_pk_add_f32 {vr(b + 2 * h, 2)}, {vr(b + 2 * h, 2)}, {vr(b + 8 + 2 * h, 2)}")
            a(f"v_cvt_pk_bf16_f32 v{b}, v{b}, v{b + 1}")
            a(f"v_cvt_pk_bf16_f32 v{b + 1}, v{b + 2}, v{b + 3}")
            a(f"buffer_store_dwordx2 {vr(b, 2)}, v{vOa}, {srd(SOUT)}, s{sO1 if i else sO0} offen offset:{64 * ct} {c.get('omod', '')}")
        if self.diag:
            self.ts("stored")
            a.wait_all()
            self.ts("end")
            a(f"s_memrealtime {sp(sTS + 6)}")
            self.ts_flush()
            for lane, r in ((60, sTS + 2), (61, sTS + 4), (62, sTS + 6), (63, sSPIN)):
                a(f"v_writelane_b32 v{vTS}, s{r}, {lane}")
            a(f"s_lshl2_add_u32 s{sT0}, s2, s{sW}")
            a(f"s_lshl_b32 s{sT0}, s{sT0}, 8")
            a(f"s_add_u32 s{sT0}, s{sT0}, {WS_TS}")
            a(f"buffer_store_dword v{vTS}, v{vOMa}, {srd(SWS)}, s{sT0} offen")
        a("s_endpgm")

    def build(self):
        a = self.a
        self.common()
        st = a.state()
        saved = {}
        for role in ("ffn", "att"):
            self.role, self.pitch = role, 3584 if role == "ffn" else 3072
            if role == "att":
                a.label("L_att")
                a.set_state(st)
            self.early(role)
            saved[role] = (a.state(), self.ts_pend)
            self.ts_pend = None
            a.raw(f"s_branch L_{role}_rest")
        for role in ("ffn", "att"):
            self.role, self.pitch = role, 3584 if role == "ffn" else 3072
            if role == "att":
                a.raw(".p2align 7")
            a.label(f"L_{role}_rest")
            state, self.ts_pend = saved[role]
            a.set_state(state)
            self.setup(role)
            self.main_loop(role)
            self.ffn_epilogue() if role == "ffn" else self.att_epilogue()
            self.phase2()
        a.label("L_exit")
        head = open("cdna_kernels/" + KNAME[:-7] + ".s.ref").read().split("; Override")[0]
        return (head + "; @launch grid=(256,1,1) block=(256,1,1) lds=163840\n"
                + '.amdgcn_target "amdgcn-amd-amdhsa--gfx950"\n.text\n'
                + f".globl {KNAME}\n.p2align 8\n.type {KNAME},@function\n{KNAME}:\n"
                + a.text() + "  s_endpgm\n"
                + f'.section .rodata,"a"\n.p2align 6\n.amdhsa_kernel {KNAME}\n'
                + "  .amdhsa_next_free_vgpr 512\n  .amdhsa_next_free_sgpr 102\n  .amdhsa_accum_offset 256\n"
                + "  .amdhsa_group_segment_fixed_size 0\n  .amdhsa_kernarg_size 80\n  .amdhsa_user_sgpr_count 2\n"
                + "  .amdhsa_user_sgpr_kernarg_segment_ptr 1\n  .amdhsa_system_sgpr_workgroup_id_x 1\n"
                + "  .amdhsa_float_denorm_mode_32 3\n.end_amdhsa_kernel\n")


if __name__ == "__main__":
    out = sys.argv[1]
    diag = len(sys.argv) > 2 and sys.argv[2] == "diag"
    cfg = json.loads(sys.argv[3]) if len(sys.argv) > 3 else None
    g = Gen2(diag, cfg)
    txt = g.build()
    open(out, "w").write(txt)
    if diag:
        json.dump(dict(g.tsn, bit=g.rolebit), open(out + ".json", "w"))
    print("instructions", len(g.a.out), "nop states", g.a.nops)
```

```python
import sys, json
import gen_kernel as G0
G0.SWO, G0.SW, G0.SG, G0.SDBG, G0.SW2, G0.SWS, G0.SOUT = 8, 12, 16, 20, 24, 28, 32
from gen_kernel import *

SWA = 88
sK, sROT, sPO, sNO2, sEX, cD0 = 47, 48, 54, 55, 84, 86
sKS1, sKS2 = 49, 87
sKV, sKS, sFL, sPH, sPG, sJ, sOM, sO0, sO1, sAP, sKV2 = 3, 92, 93, 94, 95, 96, 97, 98, 99, 100, 101
vPX, vPW, vPB, vE, vD = 248, 249, 250, 251, 252
vOMa, vOMw, vOMr, vOMv, vRa, vOa, vAP, vT16 = range(206, 214)
e0, e1, e2, e2x, e3, e4, e5, e6, e7, f0, f1, f3 = range(116, 128)
ONES = 4
vW2 = vPX
sTA, sTB, sTW, sAO, sBW, sBO, sAB = sROT, 0, 1, sJ, sAP, sPO, 84
FA = WS_KVF - WS_HF
STEP = [(sTA, b >> 2, b & 3) for b in range(16)] + [(sTB, b // 3, b % 3) for b in range(12)] + \
       [(sTW, b >> 1, b & 1) for b in range(8)]
B_OF = [0, 1, 2, 3, 16, 17, 18, 28, 29] + list(range(4, 16)) + list(range(19, 28)) + list(range(30, 36))
L_OF = [B_OF.index(b) for b in range(36)]
KVP = 768


def lanes(n):
    if n == 64:
        return ["s_mov_b64 exec, -1"]
    if n < 32:
        return [f"s_mov_b64 exec, {(1 << n) - 1:#x}"]
    return ["s_mov_b32 exec_lo, -1", f"s_mov_b32 exec_hi, {(1 << (n - 32)) - 1:#x}"]


class Gen2(Gen):
    def __init__(self, diag=False, cfg=None):
        base = dict(cap=4, depth=8, opf=1, cpf=1, pipe=1, opoll=2, wopf="x", krot=6, brot=3, rev=1, xpar=1, mpf="p", tlb="x",
                    hmod="sc1", st6=5, st7=2, st7p=2, mv7=0,
                    fd=[1] * 14, fm=[0, 1, 2, 2, 2, 2, 2, 0, 0, 1, 1, 1, 1, 0],
                    fpre=36, apre=36, ins=2, fa=11, pa=12, flate=0, alate=8, catch=2, rx=0, map=1, lpf=[], mls=[], half=0, t1=1, fe=0, ae=0, aeb=0,
                    gb=[[2, 8], [-1, 7]], go=[12, 20],
                    kd=[1, 1, 1, 1, 0, 0, 0, 0, 0], km=[0, 0, 0, 2, 0, 0, 0, 0, 2],
                    qd=[2, 2, 1, 0], qm=[3, 2, 2, 2], n1=6,
                    sd=[1, 0] * 8, sm=[0, 1, 1, 1, 1, 1] + [0] * 10)
        base.update(cfg or {})
        super().__init__(diag, base)
        self.a.pipe = bool(self.cfg["pipe"])
        self.pre = []

    def ts0(self, name, reg):
        if self.diag:
            for r in self.tsn:
                self.tsn[r].append(name)
            self.pre.append((len(self.tsn["ffn"]) - 1, reg))
            self.a(f"s_memtime {sp(reg)}")

    def emit(self, items, tag=None):
        for x in items:
            if x == []:
                continue
            if callable(x):
                x()
            elif isinstance(x, tuple):
                self.a(*x)
            else:
                self.a(x, tag)

    def common(self):
        a = self.a
        a("s_cmpk_ge_u32 s2, 256")
        a("s_cbranch_scc1 L_exit")
        if self.diag:
            a(f"s_memrealtime {sp(sTS + 2)}")
            a(f"s_memtime {sp(sTS + 4)}")
        a("s_load_dwordx16 s[4:19], s[0:1], 0")
        a("s_load_dwordx4 s[20:23], s[0:1], 64")
        rx = self.cfg["rx"]
        self.rolebit, rb, cb = ((3, 0, 1), (0, 1, 2), (2, 0, 1), (1, 0, 2))[rx]
        self.emit([
            "v_lshrrev_b32 v4, 6, v0",
            f"v_and_b32 v{vL}, 63, v0",
            f"v_readfirstlane_b32 s{sW}, v4",
            f"v_lshrrev_b32 v4, 3, v{vL}",
            f"v_lshrrev_b32 v5, 4, v{vL}",
            f"v_and_b32 v6, 7, v{vL}",
            f"s_bfe_u32 s{sT0}, s2, {0x10000 + rb:#x}",
            f"s_lshr_b32 s{sT1}, s2, 5",
            f"s_lshl3_add_u32 s{sRB}, s{sT0}, s{sT1}",
            "v_xor_b32 v7, v5, v6",
            "v_lshlrev_b32 v7, 4, v7",
            f"s_bfe_u32 s{sT0}, s2, 0x20003",
            f"s_lshl1_add_u32 s{sK}, s{sT0}, s{sT1}",
            f"s_sub_u32 s{sK}, 0, s{sK}" if self.cfg["rev"] else [],
            f"s_and_b32 s{sK}, s{sK}, {self.cfg['krot']}"] + ([
            f"s_lshr_b32 s{sT2}, s2, {abs(cb - rb) if rx else 1}",
            f"s_xor_b32 s{sT2}, s{sT2}, s2",
            f"s_bfe_u32 s{sT2}, s{sT2}, {0x10000 + min(rb, cb):#x}",
            f"s_add_u32 s{sK}, s{sK}, s{sT2}"] if self.cfg["xpar"] else []) + [
            f"v_lshl_add_u32 v{vDX}, v4, 10, v7",
            f"v_xor_b32 v{vDX + 1}, 64, v{vDX}",
            f"s_lshl2_add_u32 s{sOX}, s{sRB}, s{sW}",
            f"s_lshl_b32 s{sOX}, s{sOX}, 8",
            f"s_add_u32 s{sOX}, s{sOX}, s{sK}",
            f"s_lshl_b32 s{sOX}, s{sOX}, 7",
            f"v_add_u32 v{vDX + 1}, 7168, v{vDX + 1}",
            f"v_add_u32 v{vDX + 2}, 14336, v{vDX}",
            f"s_lshl_b32 s{sMX}, s{sW}, 12",
            f"s_bfe_u32 s{sT0}, s2, {0x10000 + cb:#x}" if rx else f"s_and_b32 s{sT0}, s2, 6",
            f"s_bfe_u32 s{sCOL}, s2, {0x20003 if rx else 0x10004:#x}",
            f"v_add_u32 v{vDX + 3}, 14336, v{vDX + 1}",
            f"v_lshlrev_b32 v{vL16}, 4, v{vL}",
            f"s_lshl2_add_u32 s{sCOL}, s{sT0}, s{sCOL}" if rx else f"s_add_u32 s{sCOL}, s{sCOL}, s{sT0}",
            f"s_lshl2_add_u32 s{sOW}, s{sK}, s{sW}",
            f"s_bitcmp1_b32 s2, {self.rolebit}",
            "s_cbranch_scc1 L_att"])

    def code_prefetch(self, role):
        pc, end = f"L_pc_{role}", "L_att_rest" if role == "ffn" else "L_exit"
        first = f"L_{role}_rest"
        self.emit([f"s_getpc_b64 {sp(sT0)}", lambda: self.a.label(pc),
                   f"s_lshr_b32 s{sT3}, s2, 4",
                   f"s_lshl_b32 s{sT3}, s{sT3}, 11",
                   f"s_add_u32 s{sT3}, s{sT3}, {first}-{pc}",
                   "v_lshrrev_b32 v10, 4, v0",
                   "v_and_b32 v11, 3, v0",
                   "v_add_u32 v10, v10, v11",
                   f"v_lshl_add_u32 v10, v10, 7, s{sT3}",
                   f"v_min_u32 v10, {end}-{pc}, v10",
                   f"v_mov_b32 v11, s{sT1}",
                   f"v_add_co_u32 v10, vcc, s{sT0}, v10",
                   "v_addc_co_u32 v11, vcc, 0, v11, vcc",
                   "s_mov_b64 exec, 0xf",
                   (f"global_load_dword v{vD}, v[10:11], off", "PFc"),
                   "s_mov_b64 exec, -1"])

    def stage_items(self, role, s):
        sw = SW if role == "ffn" else SWA
        base = STAGE[s % 3]
        xs = [f"buffer_load_dwordx4 v{vDX + i}, {srd(SX)}, s{sOX} offen offset:{1024 * i} lds" for i in range(4)]
        n = 7 if role == "ffn" else 6
        ws = [f"buffer_load_dwordx4 v{vDW + m}, {srd(sw)}, s{sOW} offen offset:{1024 * (m % 4)} lds" for m in range(n)]
        step = [f"s_cmp_eq_u32 s{sK}, {7 - s}", f"s_cselect_b32 s{sKS1}, -7, 1"]
        slots = [[f"s_add_u32 m0, s{sMX}, {base}", xs[0]], [xs[1]] + step, [xs[2], f"s_lshl_b32 s{sKS2}, s{sKS1}, 7"],
                 [xs[3], f"s_add_u32 s{sOX}, s{sOX}, s{sKS2}"]]
        for m, t in enumerate(ws):
            pre = [f"s_add_u32 m0, s{sMW}, {base + 16384 + 1024 * m}"] if m in (0, 4) else []
            post = []
            if m == 1:
                post = [f"s_mul_i32 s{sKS1}, s{sKS1}, {64 * self.pitch}"]
            if m == n - 1:
                post = [f"s_add_u32 s{sOW}, s{sOW}, s{sKS1}"]
            slots.append(pre + [t] + post)
        return [[(x, f"S{s}") for x in sl] for sl in slots]

    def pf_b(self, where):
        if str(self.cfg["wopf"]) == str(where):
            return lanes(32) + [(f"buffer_load_dword v{vD + 2}, v{vPB}, {srd(SWO)}, s{sPO} offen", "PF")]
        return []

    def pf_mid(self, s):
        pf, h = [], self.cfg["half"]
        for i, at in enumerate(self.cfg["mls"]):
            if at == s:
                n = (14, 4)[i] << h
                pf += ["s_bitcmp0_b32 s2, 2", f"s_cselect_b64 exec, {(1 << n) - 1:#x}, 0"] if h else lanes(n)
                pf += [(f"buffer_load_dword v{vD + 1 + i}, v{(vPW, vPB)[i]}, {srd((SW2, SWO)[i])}, 0 offen", "PF")]
        return pf

    def pf_chip(self, where):
        out = []
        if self.cfg["mpf"] == where:
            out += [f"s_lshl2_add_u32 s{sT2}, s2, s{sW}", f"s_mul_i32 s{sT3}, s{sT2}, {14 * 128}",
                    f"s_lshl_b32 s{sT2}, s{sT2}, 9", f"v_lshlrev_b32 v9, 7, v{vL}"] + lanes(14)
            out += [(f"buffer_load_dword v{vD + 1}, v9, {srd(SW2)}, s{sT3} offen", "PF")] + lanes(4)
            out += [(f"buffer_load_dword v{vD + 2}, v9, {srd(SWO)}, s{sT2} offen", "PF")]
        if self.cfg["tlb"] == where:
            out += ["s_mov_b64 exec, -1", f"s_lshl2_add_u32 s{sT2}, s2, s{sW}", f"s_lshl_b32 s{sT2}, s{sT2}, 7",
                    f"v_lshlrev_b32 v9, 21, v{vL}", f"s_mov_b32 s{SOUT + 2}, {2048 * 1024}",
                    f"s_mov_b32 s{SOUT + 3}, 0x20000"] + lanes(6)
            out += [(f"buffer_load_dword v{vPX}, v9, {srd(SWS)}, s{sT2} offen", "PF"), f"v_lshlrev_b32 v9, 20, v{vL}"]
            out += lanes(2) + [(f"buffer_load_dword v{vPW}, v9, {srd(SOUT)}, s{sT2} offen", "PF")]
        return out + ["s_mov_b64 exec, -1"] * bool(out)

    def early(self, role):
        a = self.a
        ffn = role == "ffn"
        sw, pitch = (SW, 3584) if ffn else (SWA, 3072)
        v8 = ["v_lshlrev_b32 v8, 2, v5", "v_and_b32 v8, 4, v8", "v_xor_b32 v8, v8, v6", "v_lshlrev_b32 v8, 4, v8"]
        if ffn:
            a(f"v_mul_u32_u24 v9, 9363, v{vL}")
            a(f"s_movk_i32 s{sT1}, 3136")
            a(f"v_add_u32 v11, 4096, v{vL16}")
        else:
            self.emit(v8 + [f"v_mul_u32_u24 v9, 3072, v4", f"v_add_u32 v9, v9, v8"])
        sal = [f"s_mul_i32 s{sOW}, s{sOW}, {16 * pitch}",
               f"s_mul_i32 s{sT0}, s{sCOL}, {448 if ffn else 128}",
               f"s_add_u32 s{sOW}, s{sOW}, s{sT0}",
               f"s_mul_i32 s{sMW}, s{sW}, {7168 if ffn else 6144}"]
        for m in range(7 if ffn else 6):
            if ffn:
                if m:
                    a(f"v_add_u32 v9, {64 * 9363}, v9")
                a(f"v_lshrrev_b32 v10, 18, v9")
                a(f"v_mad_u32_u24 v{vDW + m}, v10, s{sT1}, v{11 if m >= 4 else vL16}")
            else:
                off = (m & 1) * 8 * 3072 + (1024, 2048, 0)[m >> 1] - 1024 * (m % 4)
                a(f"v_add_u32 v{vDW + m}, {off}, v9")
            if sal:
                a(sal.pop(0))
        if self.diag:
            self.tsn[role].append("addr")
            a(f"s_memtime {sp(96)}")
        a.wait_all(vm=False)
        self.ts("karg")
        if ffn:
            a(f"s_mov_b64 {sp(SW2)}, s[14:15]")
        else:
            a(f"s_mov_b64 {sp(SWA)}, s[6:7]")
        for r, n in ((SX, 2048 * 1024), (sw, 512 * pitch)):
            a(f"s_mov_b32 s{r + 2}, {n}")
            a(f"s_mov_b32 s{r + 3}, 0x20000")
        for sl in self.stage_items(role, 0):
            self.emit(sl)
        if self.diag:
            a(f"v_writelane_b32 v{vTS}, s96, 0")
        self.ts("s0iss")
        if self.cfg["cpf"]:
            self.code_prefetch(role)
        if ffn:
            self.emit(v8)

    def setup(self, role):
        a = self.a
        ffn = role == "ffn"
        if not ffn:
            a(f"s_mov_b64 {sp(SW2)}, s[14:15]")
        self.emit([
            f"s_mov_b64 {sp(SOUT)}, s[18:19]",
            f"s_mov_b64 {sp(SWS)}, s[22:23]",
            f"s_lshr_b32 s{sRH}, s{sW}, 1",
            f"s_and_b32 s{sCH}, s{sW}, 1",
            f"v_and_b32 v10, 31, v{vL}",
            f"v_lshrrev_b32 v11, 5, v{vL}",
            f"v_bfe_u32 v12, v{vL}, 1, 3",
            "v_xor_b32 v12, v12, v11",
            "v_lshlrev_b32 v12, 4, v12",
            "v_lshl_add_u32 v12, v10, 7, v12",
            f"s_add_u32 s{sT0}, s{sMX}, {STAGE[0]}",
            f"s_xor_b32 s{sT1}, s{sMX}, 4096",
            f"s_add_u32 s{sT1}, s{sT1}, {STAGE[0]}"])
        for t in range(4):
            a(f"v_xor_b32 v13, {32 * t}, v12")
            a(f"v_add_u32 v{vXA + t}, s{sT0}, v13")
            a(f"v_add_u32 v{vXB + t}, s{sT1}, v13")
        self.emit([
            f"v_bfe_u32 v13, v{vL}, 2, 2",
            f"v_bfe_u32 v14, v{vL}, 4, 1",
            "v_lshlrev_b32 v14, 5, v14",
            f"v_and_b32 v15, 3, v{vL}",
            "v_lshl_add_u32 v14, v15, 3, v14",
            "v_lshl_add_u32 v15, v11, 3, v13"])
        if ffn:
            self.emit([
                "v_mul_u32_u24 v15, 448, v15",
                "v_add_u32 v15, v15, v14",
                f"v_add_u32 v{vW3}, {STAGE[0] + 16384 + 192}, v15",
                f"s_mul_i32 s{sT0}, s{sCH}, 320",
                f"s_add_u32 s{sT0}, s{sT0}, {STAGE[0] + 16384}",
                f"v_add_u32 v{vW}, s{sT0}, v15",
                f"s_lshl_b32 s{sT0}, s{sCH}, 7",
                f"s_add_u32 s{sT0}, s{sT0}, {STAGE[0] + 16384 + 128}",
                f"v_add_u32 v{vW2}, s{sT0}, v15"])
        else:
            self.emit([
                "v_lshl_add_u32 v15, v15, 7, v14",
                "v_lshrrev_b32 v9, 1, v13",
                f"v_xor_b32 v9, s{sCH}, v9",
                "v_lshl_add_u32 v15, v9, 6, v15",
                f"v_add_u32 v{vW}, {STAGE[0] + 16384}, v15",
                f"v_lshrrev_b32 v9, 2, v{vL}",
                "v_xor_b32 v9, v9, v5",
                "v_and_b32 v9, 1, v9",
                "v_lshlrev_b32 v9, 10, v9",
                "v_lshl_add_u32 v9, v11, 4, v9",
                f"v_add_u32 v{vW3}, {L_T0}, v9"])
            for r in range(TMP, TMP + 4):
                a(f"v_mov_b32 v{r}, 0")
            a(f"v_add_u32 v9, {L_T0 + 1024}, v{vL16}")
            a(f"ds_write_b128 v9, {vr(TMP)}", "zero")
        for s, n in ((SWS, WS_BYTES), (SW2, 1792 * 1024), (SWO, 512 * 1024), (SDBG, 256), (SG, 1024)):
            a(f"s_mov_b32 s{s + 2}, {n}")
            a(f"s_mov_b32 s{s + 3}, 0x20000")
        self.emit([
            f"v_mov_b32 v{vZ}, 0"])
        if ffn:
            self.emit([f"s_or_b32 s{sT0}, s2, s{sW}", f"s_cmp_eq_u32 s{sT0}, 0",
                       f"s_cselect_b32 s{sEX}, 1, 0", f"s_mov_b32 s{sEX + 1}, 0"])
        self.ts("setup")
        if not ffn:
            a(f"s_lshl_b32 s{sT0}, s{sK}, 7")
            a(f"v_add_u32 v9, s{sT0}, v{vL16}")
            a(f"v_and_b32 v9, 1023, v9")
            a(f"s_mov_b32 m0, {L_T0}")
            a(f"buffer_load_dwordx4 v9, {srd(SG)}, 0 offen lds", "S0")
        self.emit(self.pf_chip("0"))
        for x in self.stage_items(role, 1):
            self.emit(x)
        self.emit(self.pf_chip("p"))
        if self.cfg["mls"]:
            h = self.cfg["half"]
            idx = [f"s_lshr_b32 s{sT2}, s2, 3", f"s_and_b32 s{sT3}, s2, 3", f"s_lshl2_add_u32 s{sT2}, s{sT2}, s{sT3}",
                   f"s_lshl2_add_u32 s{sT2}, s{sT2}, s{sW}"] if h else [f"s_lshl2_add_u32 s{sT2}, s2, s{sW}"]
            self.emit(idx + [f"s_mul_i32 s{sT3}, s{sT2}, {14 * 128 << h}",
                             f"v_lshl_add_u32 v{vPW}, v{vL}, 7, s{sT3}", f"s_lshl_b32 s{sT2}, s{sT2}, {9 + h}",
                             f"v_lshl_add_u32 v{vPB}, v{vL}, 7, s{sT2}"])
            pf = self.pf_mid(-1)
            self.emit(pf + ["s_mov_b64 exec, -1"] * bool(pf))
        if self.cfg["lpf"]:
            self.emit([f"s_lshr_b32 s{sT2}, s2, 3", f"s_lshl2_add_u32 s{sT2}, s{sT2}, s{sW}"])
            if self.cfg["map"]:
                self.emit([f"s_and_b32 s{sT1}, s2, 1", f"s_lshl_b32 s{sT1}, s{sT1}, 9",
                           f"v_and_b32 v9, 3, v{vL}", f"v_lshl_add_u32 v9, v9, 7, s{sT1}",
                           f"v_lshrrev_b32 v{vPB}, 2, v{vL}", f"v_lshl_add_u32 v9, v{vPB}, 10, v9",
                           f"s_mul_i32 s{sT3}, s{sT2}, {14 * 1024}", f"v_add_u32 v{vPW}, s{sT3}, v9",
                           f"s_lshl_b32 s{sT3}, s{sT2}, 12", f"v_add_u32 v{vPB}, s{sT3}, v9"])
            else:
                self.emit([f"s_mul_i32 s{sT3}, s{sT2}, {112 * 128}", f"v_lshl_add_u32 v{vPW}, v{vL}, 7, s{sT3}",
                           f"s_lshl_b32 s{sT3}, s{sT2}, 12", f"v_lshl_add_u32 v{vPB}, v{vL}, 7, s{sT3}"])
        tail = self.pf_b("p")
        if ffn:
            tail += [f"s_mov_b64 exec, {sp(sEX)}", (f"buffer_load_dword v{vE}, v{vZ}, {srd(SWS)}, 0 offen sc1", "E")]
        self.emit(tail + ["s_mov_b64 exec, -1"] * bool(tail))

    def fillers(self, role):
        f = []
        for c, val in ((cM16, 0xFFFF0000), (cNL2E, 0xBFB8AA3B), (cONE, 0x3F800000), (cEPS, 0x358637BD),
                       (cL2E, 0x3FB8AA3B)):
            f += [f"s_mov_b32 s{c}, {val:#x}", f"s_mov_b32 s{c + 1}, {val:#x}"]
        f += [f"s_mov_b32 s{cD0}, 0x3f80",
              f"s_mov_b32 s{sSPIN}, {self.cfg['spin']}",
              f"s_mov_b32 s{SOUT + 2}, {2048 * 1024}",
              f"s_mov_b32 s{SOUT + 3}, 0x20000",
              ] + ([
              f"s_bfe_u32 s{sRT}, s2, 0x10002",
              f"s_lshr_b32 s{sT0}, s2, 4",
              f"s_lshl4_add_u32 s{sRT}, s{sRT}, s{sT0}",
              f"s_and_b32 s{sCC}, s2, 3",
              f"s_bfe_u32 s{sT0}, s2, 0x10003",
              f"s_lshl1_add_u32 s{sCC}, s{sCC}, s{sT0}"] if self.cfg["map"] == 2 else [
              f"s_bfe_u32 s{sRT}, s2, 0x20001",
              f"s_lshr_b32 s{sT0}, s2, 5",
              f"s_lshl3_add_u32 s{sRT}, s{sRT}, s{sT0}",
              f"s_and_b32 s{sCC}, s2, 1",
              f"s_bfe_u32 s{sT0}, s2, 0x20003",
              f"s_lshl2_add_u32 s{sCC}, s{sCC}, s{sT0}"] if self.cfg["map"] else [
              f"s_and_b32 s{sRT}, s2, 7",
              f"s_lshr_b32 s{sT0}, s2, 6",
              f"s_lshl2_add_u32 s{sRT}, s{sRT}, s{sT0}",
              f"s_bfe_u32 s{sCC}, s2, 0x30003"]) + [
              f"v_lshl_add_u32 v{vDB}, v4, 10, v8",
              f"v_add_u32 v{vDB + 1}, 7168, v{vDB}",
              f"s_mul_i32 s{sBW}, s{sW}, {448 * 1024}",
              f"s_lshl_b32 s{sT0}, s{sCC}, 7",
              f"s_add_u32 s{sBW}, s{sBW}, s{sT0}",
              f"s_lshl_b32 s{sBO}, s{sW}, 17",
              f"s_add_u32 s{sBO}, s{sBO}, s{sT0}",
              f"s_add_u32 s{sROT}, s{sRT}, s{sCC}",
              f"s_mul_i32 s{sROT}, s{sROT}, {-1 if self.cfg['rev'] else 1}",
              f"s_and_b32 s{sROT}, s{sROT}, {self.cfg['brot']}",
              f"s_lshl_b32 s{sT2}, s{sROT}, 3"]
        for tab, val in ((sTA, 0x180E0A00), (sTB, 0x15120704), (sTW, 0x06040200)):
            f += [f"s_mov_b32 s{sT0}, {val:#x}", f"s_mov_b32 s{sT1}, {val:#x}",
                  f"s_lshr_b64 {sp(sT0)}, {sp(sT0)}, s{sT2}", f"s_mov_b32 s{tab}, s{sT0}"]
        f += [
              f"s_lshl_b32 s{sBA}, s{sW}, 14",
              f"s_mul_i32 s{sBB}, s{sW}, {10 * K}",
              f"s_add_u32 s{sBB}, s{sBB}, {REGB}",
              "v_lshl_add_u32 v15, v11, 2, v13",
              "v_lshl_add_u32 v15, v15, 7, v14",
              "v_lshrrev_b32 v9, 1, v13",
              "v_lshl_add_u32 v15, v9, 6, v15",
              f"v_add_u32 v{vTA}, s{sBA}, v15",
              f"v_add_u32 v{vTB}, s{sBB}, v15",
              "v_xor_b32 v15, 64, v15",
              f"v_add_u32 v{vTA + 1}, s{sBA}, v15",
              f"v_add_u32 v{vTB + 1}, s{sBB}, v15",
              f"s_lshl1_add_u32 s{sT0}, s{sRB}, s{sRH}",
              f"s_lshl3_add_u32 s{sT0}, s{sT0}, s{sCOL}",
              f"s_lshl1_add_u32 s{sT0}, s{sT0}, s{sCH}",
              f"s_lshl_b32 s{sT0}, s{sT0}, 7",
              f"s_add_u32 s{sFL}, s{sT0}, {WS_HF if role == 'ffn' else WS_OF}",
              f"s_lshl2_add_u32 s{sT1}, s{sRB}, s{sW}",
              f"s_xor_b32 s{sT2}, s{sT1}, 1",
              f"s_mul_i32 s{sT1}, s{sT1}, {144 * K}",
              f"s_mul_i32 s{sT2}, s{sT2}, {144 * K}"]
        if role == "ffn":
            f += [f"s_mul_i32 s{sT0}, s{sCOL}, {14 * K}",
                  f"s_add_u32 s{sT0}, s{sT0}, {WS_A}",
                  f"s_add_u32 s{sH3}, s{sT1}, s{sT0}",
                  f"s_mul_i32 s{sT3}, s{sCH}, {10 * K}",
                  f"s_add_u32 s{sHA}, s{sH3}, s{sT3}",
                  f"s_add_u32 s{sHB}, s{sT2}, s{sT0}",
                  f"s_add_u32 s{sHB}, s{sHB}, s{sT3}",
                  f"s_add_u32 s{sH3}, s{sH3}, {6 * K}"]
        else:
            f += [f"s_lshl1_add_u32 s{sT0}, s{sCOL}, s{sCH}",
                  f"s_lshl_b32 s{sT3}, s{sT0}, 11",
                  f"s_add_u32 s{sT3}, s{sT3}, {WS_A + 112 * K}",
                  f"s_add_u32 s{sHA}, s{sT1}, s{sT3}",
                  f"s_add_u32 s{sHB}, s{sT2}, s{sT3}",
                  f"s_lshl_b32 s{sT0}, s{sT0}, 13",
                  f"s_lshl1_add_u32 s{sT1}, s{sRB}, s{sRH}",
                  f"s_lshl_b32 s{sT1}, s{sT1}, 8",
                  f"s_add_u32 s{sT0}, s{sT0}, s{sT1}",
                  f"s_add_u32 s{sH3}, s{sT0}, {WS_OMG}",
                  f"v_and_b32 v12, 15, v{vL}",
                  "v_lshlrev_b32 v13, 8, v11",
                  "v_lshl_add_u32 v9, v12, 4, v13",
                  f"s_lshl_b32 s{sT0}, s{sW}, 11",
                  f"s_add_u32 s{sT0}, s{sT0}, {L_SCR}",
                  f"v_add_u32 v13, s{sT0}, v9",
                  f"s_lshl_b32 s{sT0}, s{sW}, 6",
                  f"s_add_u32 s{sT0}, s{sT0}, {L_T1}",
                  f"v_lshl_add_u32 v14, v11, 4, s{sT0}",
                  f"v_cndmask_b32 v{e0}, v13, v14, {sp(cM16)}",
                  "v_add_u32 v13, 1024, v13",
                  "v_add_u32 v14, 32, v14",
                  f"v_cndmask_b32 v{e1}, v14, v13, {sp(cM16)}",
                  f"s_lshl_b32 s{sT0}, s{sW}, 7",
                  f"s_add_u32 s{sT0}, s{sT0}, {L_T1 + 1024}",
                  f"v_lshl_add_u32 v{e2}, v10, 2, s{sT0}",
                  f"v_xor_b32 v{e2x}, 128, v{e2}",
                  f"s_lshl1_add_u32 s{sT1}, s{sCH}, s{sRH}",
                  f"s_lshl_b32 s{sT0}, s{sT1}, 10",
                  f"s_add_u32 s{sT0}, s{sT0}, {L_SCR}",
                  f"v_add_u32 v{e3}, s{sT0}, v{vL16}",
                  f"s_lshl_b32 s{sT0}, s{sT1}, 5",
                  f"s_add_u32 s{sT0}, s{sT0}, {L_T1}",
                  f"v_bfe_u32 v15, v{vL}, 3, 1",
                  "v_lshlrev_b32 v13, 9, v15",
                  "v_lshl_add_u32 v13, v6, 2, v13",
                  f"v_add_u32 v{e4}, s{sT0}, v13",
                  f"s_lshl2_add_u32 s{sT2}, s{sCOL}, s{sT1}",
                  f"s_mul_i32 s{sKV}, s{sT2}, {16 * KVP}",
                  f"s_add_u32 s{sKV}, s{sKV}, {WS_KV}",
                  f"s_add_u32 s{sKV2}, s{sKV}, {8 * KVP}",
                  f"s_mul_i32 s{sKS}, s{sRB}, {KVP}",
                  f"s_add_u32 s{sKS}, s{sKS}, s{sKV}",
                  f"v_mul_u32_u24 v{e6}, 12, v{vL}",
                  f"v_add_u32 v{e7}, {4 * KVP}, v{e6}",
                  f"s_lshl_b32 s{sT3}, s{sRH}, 8",
                  f"s_add_u32 s{sT3}, s{sT3}, {L_T1 + 1024}",
                  f"v_lshl_add_u32 v{e5}, v{vL}, 2, s{sT3}",
                  f"s_mul_i32 s{sT0}, s{sT1}, 576",
                  f"s_add_u32 s{sT0}, s{sT0}, {L_T1 + 1536}",
                  "v_lshlrev_b32 v13, 4, v10",
                  "v_lshl_add_u32 v13, v11, 3, v13",
                  f"v_add_u32 v{f0}, s{sT0}, v13",
                  f"v_bfe_u32 v13, v{vL}, 2, 1",
                  "v_lshlrev_b32 v13, 4, v13",
                  "v_lshl_add_u32 v13, v15, 3, v13",
                  f"v_and_b32 v14, 3, v{vL}",
                  "v_lshl_add_u32 v13, v14, 1, v13",
                  f"s_add_u32 s{sT0}, s{sT0}, 512",
                  f"v_add_u32 v{f1}, s{sT0}, v13",
                  f"s_mul_i32 s{sT0}, s{sCH}, 1152",
                  f"s_add_u32 s{sT0}, s{sT0}, {L_T1 + 1536}",
                  "v_lshlrev_b32 v14, 4, v11",
                  "v_add_u32 v14, 512, v14",
                  f"v_cndmask_b32 v13, v9, v14, {sp(cM16)}",
                  f"v_add_u32 v{f3}, s{sT0}, v13"]
        f += [f"v_and_b32 v{vPA}, 3, v{vL}",
              f"v_lshlrev_b32 v{vPA}, 7, v{vPA}",
              f"s_lshl2_add_u32 s{sT0}, s{sRT}, s{sW}",
              f"s_lshl_b32 s{sT0}, s{sT0}, 9",
              f"s_add_u32 s{sPH}, s{sT0}, {WS_HF}",
              f"s_add_u32 s{sPG}, s{sT0}, {WS_OF}",
              f"s_mul_i32 s{sAO}, s{sRT}, {288 * K}",
              f"s_add_u32 s{sAO}, s{sAO}, {WS_A + 112 * K}",
              f"s_lshl_b32 s{sT0}, s{sW}, 13",
              f"s_add_u32 s{sAO}, s{sAO}, s{sT0}",
              f"s_lshl_b32 s{sT0}, s{sCC}, 7",
              f"s_lshl_b32 s{sO0}, s{sRT}, 16",
              f"s_add_u32 s{sO0}, s{sO0}, s{sT0}",
              f"s_add_u32 s{sO0}, s{sO0}, s{sBA}",
              f"s_add_u32 s{sO1}, s{sO0}, 8192",
              f"s_lshl_b32 s{sT0}, s{sW}, 15",
              f"s_lshl_b32 s{sT2}, s{sRT}, 8",
              f"s_add_u32 s{sT0}, s{sT0}, s{sT2}",
              f"s_add_u32 s{sOM}, s{sT0}, {WS_OMG}",
              f"s_lshl_b32 s{sT0}, s{sW}, 8",
              f"s_add_u32 s{sT0}, s{sT0}, {L_T0}",
              f"v_lshlrev_b32 v{vOMa}, 2, v{vL}",
              f"v_add_u32 v{vOMw}, s{sT0}, v{vOMa}",
              f"v_lshl_add_u32 v{vOMr}, v11, 4, s{sT0}",
              f"s_lshl_b32 s{sT0}, s{sRH}, 13",
              f"s_lshl_b32 s{sT1}, s{sCH}, 11",
              f"s_add_u32 s{sT0}, s{sT0}, s{sT1}",
              f"v_add_u32 v{vRa}, s{sT0}, v{vL16}",
              "v_and_b32 v9, 1, v4",
              "v_lshl_add_u32 v9, v9, 2, v5",
              "v_lshlrev_b32 v13, 3, v6",
              f"v_lshl_add_u32 v{vOa}, v9, 10, v13"]
        if role == "att":
            f += [f"v_mov_b32 v{ONES + i}, 0x3f803f80" for i in range(4)]
        return f

    def reads(self, role, t):
        out = super().reads(role, t)
        if role == "ffn":
            w = WF + 16 * (t & 1) + 8
            out[3] = [(f"ds_read_b64_tr_b16 {vr(w + 2 * j, 2)}, v{vW2} offset:{t * 7168 + j * 1792}", "r1") for j in range(2)]
        return out

    def b_dma(self, l):
        base, off = self.b_slot(l)
        tab, g, r = STEP[B_OF[l]]
        rs = srd(SWO if tab == sTW else SW2)
        pre = []
        if r == 0:
            pre = [f"s_bfe_u32 s{sT3}, s{tab}, {0x80000 + 8 * g:#x}", f"s_lshl_b32 s{sT3}, s{sT3}, 14",
                   f"s_add_u32 s{sOB}, s{sT3}, s{sBO if tab == sTW else sBW}"]
        return [pre + [f"s_add_u32 m0, {base}, {off}", f"buffer_load_dwordx4 v{vDB}, {rs}, s{sOB} offen lds"],
                [f"buffer_load_dwordx4 v{vDB + 1}, {rs}, s{sOB} offen offset:1024 lds",
                 f"s_add_u32 s{sOB}, s{sOB}, 16384"]]

    def b_pair(self, b):
        assert b == self.nb and (b < NB_REG or b - NB_REG < self.nm), (b, self.nb, self.nm)
        self.nb += 1
        pre = [lambda: self.a.wait_lg(f"M{b - NB_REG}")] if b >= NB_REG else []
        s0, s1 = [[(x, f"B{b}") for x in sl] for sl in self.b_dma(b)]
        return [pre + s0, s1]

    def move_pair(self, b):
        assert b == self.nm and b < self.nb, (b, self.nb, self.nm)
        self.nm += 1
        r = [(x, f"M{b}") for x in self.b_reads(b, lambda o: ar(8 * b + o, 2))]
        return [[lambda: self.a.wait_vm(f"B{b}")] + r[:2], r[2:]]

    def stage(self, role, s):
        a = self.a
        plan = {(t, g): [] for t in range(4) for g in range(7)}
        for t in range(3):
            for g, grp in enumerate(self.reads(role, t + 1)):
                plan[t, g] += grp
        plan[3, 1] += [lambda: a.wait_vm(f"S{s + 1}"), "s_barrier"]
        if s < 7:
            for g, grp in enumerate(self.reads(role, 0)):
                plan[3, g + 1] += grp
        pos = [(t, g) for t in range(3) for g in (1, 3, 5, 6)] + [(3, g) for g in range(2, 6)]
        spread = lambda sl, n: [sl[i * len(sl) // n] if (i + 1) * len(sl) // n > i * len(sl) // n else [] for i in range(n)]
        pairs = lambda k: [sl for b in range(self.nb, self.nb + k) for sl in self.b_pair(b)]
        if s < 6:
            slots = self.stage_items(role, s + 2)
        elif s == 6:
            slots = spread(pairs(self.cfg["st6"]), 16)
        else:
            slots = spread(pairs(self.cfg["st7"]), 12) + pairs(self.cfg["st7p"])
        assert len(slots) <= len(pos)
        for p, sl in zip(pos, slots):
            pre = [x for x in sl if isinstance(x, tuple) and x[0].startswith("s_add_u32 m0")]
            at = 2 if p == (3, 1) else 0
            plan[p][at:at] = pre
            plan[p] += [x for x in sl if x not in pre]
        if s < 7:
            d = DELTA[s % 3] & 0xFFFFFFFF
            add = lambda r: f"v_add_u32 v{r}, {d:#x}, v{r}"
            plan[0, 0] += [add(vXA)]
            plan[0, 2] += [add(vXB)]
            plan[0, 4] += [add(vXA + 1), add(vXB + 1)]
            plan[1, 4] += [add(vXA + 2), add(vXB + 2)]
            plan[2, 4] += [add(vXA + 3), add(vXB + 3)]
            plan[2, 5] += [add(vW)] + [add(vW2)] * (role == "ffn")
            plan[2, 6] += [add(vW3) if role == "ffn" else f"v_add_u32 v{vW3}, 128, v{vW3}"]
        pf = self.pf_b(s)
        pf += self.pf_mid(s)
        for i, at in enumerate(self.cfg["lpf"]):
            if at == s and i < 2:
                pf += [f"v_add_u32 v{vPW}, 7168, v{vPW}"] * i + lanes(56)
                pf += [(f"buffer_load_dword v{vD + 1}, v{vPW}, {srd(SW2)}, 0 offen", "PF")]
            if at == s and i == 2:
                pf += lanes(16 if self.cfg["map"] else 32)
                pf += [(f"buffer_load_dword v{vD + 2}, v{vPB}, {srd(SWO)}, 0 offen", "PF")]
        if pf:
            plan[3, 6 if role == "ffn" else 5] += pf + ["s_mov_b64 exec, -1"]
        if s == 2 and role == "ffn":
            plan[1, 0] += [f"v_add_u32 v{vE}, 1, v{vE}", f"v_max_u32 v{vE}, 1, v{vE}"]
            plan[1, 2] += [f"s_mov_b64 exec, {sp(sEX)}",
                           (f"buffer_store_dword v{vE}, v{vZ}, {srd(SDBG)}, 0 offen sc1", "E"),
                           (f"buffer_store_dword v{vE}, v{vZ}, {srd(SWS)}, 0 offen sc1", "E"),
                           "s_mov_b64 exec, -1"]
        if s == 6:
            plan[0, 0] += [(f"buffer_load_dword v{vNO}, v{vZ}, {srd(SDBG)}, 0 offen sc1", "nonce")]
        if s == 7:
            mv = [x for b in range(self.cfg.get("mv7", 6)) for x in self.move_pair(b)]
            mpos = [(t, g) for t in range(3) for g in (5, 6)][self.cfg.get("mv7skip", 0):] + [(3, g) for g in range(7)]
            while mv:
                for p in mpos:
                    if mv:
                        plan[p] += mv.pop(0)
                mpos = mpos[-7:]
        for t in range(4):
            a.lg = self.retag(self.retag(a.lg, "r0", "o0"), "r1", "o1")
            if t == 3:
                a.wait_lg("o0", "o1")
            for g, m in enumerate(self.mfmas(role, t)):
                if g == 0:
                    a.wait_lg("o0")
                if g == 4:
                    a.wait_lg("o1")
                if s == 0 and t == 0:
                    m = m.rsplit(",", 1)[0] + ", 0"
                a(m)
                self.emit(plan[t, g])
                cap = self.cfg["cap"] - (2 if role == "att" and g == 6 else 0)
                room = cap - len([x for x in plan[t, g] if not callable(x)])
                while room > 0 and self.fill and (s or t):
                    a(self.fill.pop(0))
                    room -= 1

    def main_loop(self, role):
        a = self.a
        self.fill = self.fillers(role)
        self.nb = self.nm = 0
        self.started = False
        for _ in range(self.cfg.get("nsetup", 0)):
            a(self.fill.pop(0))
        self.ts("issued")
        a.wait_lg("zero")
        a.wait_vm("S0")
        a("s_barrier")
        self.ts("s0rdy")
        for grp in self.reads(role, 0):
            self.emit(grp)
        for s in range(8):
            if s == 6:
                assert not self.fill, len(self.fill)
            self.stage(role, s)
            if s in self.cfg.get("tss", (1, 3, 5)):
                self.ts(f"st{s}")
        self.ts("loopend")

    def spin(self, check, reload, branch_ok, branch_retry):
        a = self.a
        done, retry = self.lab("ok"), self.lab("retry")
        for x in check:
            a(x)
        a.raw(f"{branch_ok} {done}")
        a.label(retry)
        a.raw(f"s_sub_u32 s{sSPIN}, s{sSPIN}, 1")
        a.raw(f"s_cmp_lt_i32 s{sSPIN}, 0")
        a.raw(f"s_cbranch_scc1 {done}")
        for x in [reload] if isinstance(reload, str) else reload:
            a.raw(x)
        a.raw("s_waitcnt vmcnt(0)")
        for x in check:
            a.raw(x)
        a.raw(f"{branch_retry} {retry}")
        a.label(done)

    def bg(self, dmas=(), moves=(), where=None):
        out = []
        if isinstance(dmas, int):
            dmas = range(self.nb, min(36, self.nb + dmas))
        if isinstance(moves, int):
            moves = range(self.nm, min(NB_REG, self.nm + moves))
        for b in dmas:
            out += sum(self.b_pair(b), [])
        if where is not None:
            pf = self.pf_b(where)
            out += pf + ["s_mov_b64 exec, -1"] * bool(pf)
        for b in moves:
            out += sum(self.move_pair(b), [])
        return out

    def ffn_epilogue(self):
        a = self.a
        fd, fm = self.cfg["fd"], self.cfg["fm"]
        pend = []
        for n in range(14):
            k, half = n >> 1, n & 1
            src = ACC + 16 * k + 8 * half
            t = TMP + 8 * (n & 1)
            o = TMP + 16 + 4 * (n % 3)
            if n and n % 4 == 0:
                self.ts(f"silu{n}")
            self.emit(self.bg(min(1, fd[n])))
            for i in range(4):
                a(f"v_pk_mul_f32 {vr(t + 2 * i, 2)}, {vr(src + 2 * i, 2)}, {sp(cNL2E)}")
            for i in range(8):
                a(f"v_exp_f32 v{t + i}, v{t + i}")
            for i in range(4):
                a(f"v_pk_add_f32 {vr(t + 2 * i, 2)}, {vr(t + 2 * i, 2)}, {sp(cONE)}")
            self.emit(self.bg(max(0, fd[n] - 1), fm[n]))
            for i in range(8):
                a(f"v_rcp_f32 v{t + i}, v{t + i}")
            for i in range(4):
                a(f"v_pk_mul_f32 {vr(t + 2 * i, 2)}, {vr(t + 2 * i, 2)}, {vr(src + 2 * i, 2)}")
            for i in range(4):
                a(f"v_cvt_pk_bf16_f32 v{o + i}, v{t + 2 * i}, v{t + 2 * i + 1}")
            if n == 8:
                a(f"s_mul_i32 s{sT0}, s{sCH}, -6144")
                a(f"s_add_u32 s{sT0}, s{sT0}, 4096")
                a(f"s_add_u32 s{sHA}, s{sHA}, s{sT0}")
                a(f"s_add_u32 s{sHB}, s{sHB}, s{sT0}")
            so = sH3 if k == 6 else (sHB if k & 1 else sHA)
            off = 1024 * half + (2048 if k in (2, 3) else 0)
            pend.append(f"buffer_store_dwordx4 {vr(o)}, v{vL16}, {srd(SWS)}, s{so} offen offset:{off} {self.cfg['hmod']}")
            if n:
                self.emit(pend, "Ha" if n < 8 else "H")
                pend = []
            if n == 6:
                self.get_nonce()
            if n == self.cfg["fa"]:
                a(f"s_add_u32 s{sT0}, s{sFL}, {FA}")
                a.wait_vm("Ha")
                self.set_flag(sT0)
                self.ts("flaga")
            if n == self.cfg["pa"]:
                self.emit(self.poll_a())
        self.ts("pub")
        if self.cfg["fe"]:
            self.emit(self.bg(self.cfg["fe"] - 1))
            self.p2_start(True)
        self.emit(self.bg(range(self.nb, min(self.cfg["fpre"], self.nm + NB_REG))))
        self.emit(self.bg([], range(self.nm, NB_REG)))
        self.emit(self.bg(range(self.nb, self.cfg["fpre"])))
        if self.cfg["pa"] > 13:
            self.emit(self.poll_a())
        self.late = [lambda: a.wait_vm("H"), lambda: self.set_flag(sFL), lambda: self.ts("flag")]
        self.lateat = self.cfg["flate"]

    def poll_a(self):
        return [f"s_add_u32 s{sAB + 1}, s{sPH}, {FA}", (self.poll_load(sAB + 1), "poll")]

    def phi(self, src, dst, n, bg1=(), bg2=(), bg3=()):
        a = self.a
        t = TMP + 16 * (n & 1)
        u = t + 8
        for i in range(4):
            a(f"v_pk_mul_f32 {vr(t + 2 * i, 2)}, {vr(src + 2 * i, 2)}, {sp(cL2E)}")
        for i in range(4):
            a(f"v_pk_add_f32 {vr(u + 2 * i, 2)}, {vr(src + 2 * i, 2)}, {sp(cEPS)}")
        self.emit(bg1)
        for i in range(8):
            a(f"v_exp_f32 v{t + i}, v{t + i} clamp")
        self.emit(bg2)
        for i in range(8):
            a(f"v_max_f32 v{u + i}, s{cEPS}, v{u + i}")
        self.emit(bg3)
        for i in range(4):
            a(f"v_pk_add_f32 {vr(t + 2 * i, 2)}, {vr(t + 2 * i, 2)}, {vr(u + 2 * i, 2)}")
        for i in range(4):
            a(f"v_cvt_pk_bf16_f32 v{dst + i}, v{t + 2 * i}, v{t + 2 * i + 1}")

    def att_epilogue(self):
        a = self.a
        KA, VA, QA, LG = ACC, ACC + 32, ACC + 64, ACC + 96
        PK, PV, KV, ZZ, MM = 128, 144, 16, 168, 48
        G, GB, GO = 164, 165, 166
        c = self.cfg
        kb = lambda i, w=None: self.bg(c["kd"][i], c["km"][i], w)
        cv = lambda n: [f"v_cvt_pk_bf16_f32 v{PV + i}, v{VA + 2 * i}, v{VA + 2 * i + 1}" for i in range(4 * n, 4 * n + 4)]
        mk = lambda n: f"v_mfma_f32_32x32x16_bf16 {vr(KV, 16)}, {vr(PK + 4 * n)}, {vr(PV + 4 * n)}, {vr(KV, 16) if n else 0}"
        mz = lambda n: f"v_mfma_f32_32x32x16_bf16 {vr(ZZ, 16)}, {vr(PK + 4 * n)}, {vr(ONES)}, {vr(ZZ, 16) if n else 0}"
        gate = [f"v_mul_f32 v{G}, s{cNL2E}, v{LG}", f"v_exp_f32 v{G}, v{G}", f"v_add_f32 v{G}, 1.0, v{G}",
                f"v_rcp_f32 v{G}, v{G}", f"ds_write_b32 v{e2}, v{G}"]
        self.phi(KA, PK, 0, kb(0), kb(1, "e0"), cv(0))
        self.phi(KA + 8, PK + 4, 1, kb(2) + [mz(0)], kb(3, "e1"), cv(1))
        self.get_nonce()
        a(f"s_and_b32 s{sNO2}, s{sNON}, 0xbfff")
        self.phi(KA + 16, PK + 8, 2, [mk(0)] + gate[:2] + kb(4), [mz(1)] + gate[2:4] + kb(5), [mk(1)] + cv(2))
        self.phi(KA + 24, PK + 12, 3, [mz(2), gate[4]] + kb(6), [mk(2), f"v_mov_b32 v{vT16}, s{sNO2}"] + kb(7), cv(3))
        a(mz(3))
        a(mk(3))
        self.emit(kb(8))
        for h in range(2):
            for r in range(8 * h, 8 * h + 8):
                x, y = (KV + r, ZZ + r) if h == 0 else (ZZ + r, KV + r)
                a(f"v_cndmask_b32 v{MM + r}, v{x}, v{y}, {sp(cM16)}")
                if r % 4 == 3:
                    a(f"ds_write_b128 v{e0 + h}, {vr(MM + r - 3)} offset:{512 * ((r >> 2) & 1)}")
        a.wait_all(vm=False)
        a("s_barrier")
        a(f"ds_read_b128 {vr(64)}, v{e3}")
        a(f"ds_read_b128 {vr(68)}, v{e3} offset:4096")
        a(f"ds_read_b32 v72, v{e4}")
        a(f"ds_read_b32 v73, v{e4} offset:128")
        a(f"ds_read_b32 v{GB}, v{e2x}")
        a(f"ds_read_b32 v{GO}, v{e5}")
        a(f"v_pk_add_f32 {vr(64, 2)}, {vr(64, 2)}, {vr(68, 2)}")
        a(f"v_pk_add_f32 {vr(66, 2)}, {vr(66, 2)}, {vr(70, 2)}")
        a(f"v_add_f32 v72, v72, v73")
        a(f"v_cvt_pk_bf16_f32 v64, v64, v65")
        a(f"v_cvt_pk_bf16_f32 v65, v66, v67")
        a(f"v_cvt_pk_bf16_f32 v66, v72, v72")
        a(f"v_and_or_b32 v66, v66, s{cM16}, v{vT16}")
        a(f"buffer_store_dwordx3 {vr(64, 3)}, v{e6}, {srd(SWS)}, s{sKS} offen sc1", "KV")
        self.ts("pub")
        PQ = 128
        for n in range(4):
            self.phi(QA + 8 * n, PQ + 4 * n, n, self.bg(min(2, c["qd"][n])), self.bg([], c["qm"][n]),
                     self.bg(max(0, c["qd"][n] - 2)))
        a(f"v_sub_f32 v{GO}, 1.0, v{GO}")
        self.ts("phiq")
        P0, S = 16, 96
        ld = lambda p: (f"buffer_load_dwordx3 {vr(P0 + 4 * p, 3)}, v{e7 if p & 4 else e6}, {srd(SWS)}, "
                        f"s{sKV2 if p & 8 else sKV} offen offset:{KVP * (p & 3)} sc1")
        for p in range(16):
            a(ld(p))
        a(f"buffer_store_dword v{GO}, v{vOMa}, {srd(SWS)}, s{sH3} offen sc1", "O")
        for d, m in c.get("n1x", []):
            self.emit(self.bg(d, m))
        self.emit(self.bg(c["n1"]))
        self.ts("kvld")
        for h in range(2):
            ps = range(8 * h, 8 * h + 8)
            chk = [f"v_xor_b32 v9, s{sNO2}, v{P0 + 4 * ps[0] + 2}"]
            chk += [f"v_bitop3_b32 v9, s{sNO2}, v{P0 + 4 * p + 2}, v9 bitop3:0xbe" for p in ps[1:]]
            chk += ["v_cmp_ne_u16 vcc, 0, v9"]
            self.spin(chk, [ld(p) for p in ps], "s_cbranch_vccz", "s_cbranch_vccnz")
            self.ts(f"kv{h}")
            if c["ae"] == 1 + h:
                self.emit(self.poll_a())
            for p in ps:
                w = P0 + 4 * p
                if p == 0:
                    self.emit([f"v_lshlrev_b32 v{S}, 16, v{w}", f"v_and_b32 v{S + 1}, s{cM16}, v{w}",
                               f"v_lshlrev_b32 v{S + 2}, 16, v{w + 1}", f"v_and_b32 v{S + 3}, s{cM16}, v{w + 1}",
                               f"v_and_b32 v{S + 4}, s{cM16}, v{w + 2}"])
                else:
                    for i in range(5):
                        a(f"v_dot2c_f32_bf16 v{S + i}, s{cONE if i & 1 or i == 4 else cD0}, v{w + (i >> 1)}")
                self.emit(self.bg(c["sd"][p], c["sm"][p]))
        if c["ae"] in (0, 3):
            self.emit(self.poll_a())
        a(f"v_cvt_pk_bf16_f32 v{S}, v{S}, v{S + 1}")
        a(f"v_cvt_pk_bf16_f32 v{S + 1}, v{S + 2}, v{S + 3}")
        a(f"v_cvt_pk_bf16_f32 v{S + 4}, v{S + 4}, v{S + 4}")
        a(f"ds_write_b64 v{f0}, {vr(S, 2)}")
        a("s_mov_b64 exec, 0xffff")
        a(f"ds_write_b16 v{f1}, v{S + 4}")
        a("s_mov_b64 exec, -1")
        self.ts("kvsum")
        if c["ae"] and c["aeb"]:
            self.p2_start(True)
        a.wait_all(vm=False)
        a("s_barrier")
        F = 144
        a(f"ds_read_b128 {vr(F)}, v{f3}")
        a(f"ds_read_b128 {vr(F + 4)}, v{f3} offset:576")
        for n in range(4):
            rf, h = n >> 1, n & 1
            a(f"v_mfma_f32_32x32x16_bf16 {vr(16 + 16 * n, 16)}, {vr(F + 4 * h)}, {vr(PQ + 8 * rf + 4 * h)}, 0")
        if c["ae"] and not c["aeb"]:
            self.p2_start(True)
        for n in range(4):
            rf, h = n >> 1, n & 1
            d = 16 + 16 * n
            o = TMP + 4 * n
            a(f"v_add_f32 v{d + 8}, s{cEPS}, v{d + 8}")
            a(f"v_rcp_f32 v{d + 8}, v{d + 8}")
            a(f"v_mul_f32 v{d + 8}, v{d + 8}, v{GB if rf else G}")
            for i in range(4):
                a(f"v_pk_mul_f32 {vr(d + 2 * i, 2)}, {vr(d + 2 * i, 2)}, {vr(d + 8, 2)} op_sel_hi:[1,0]")
            for i in range(4):
                a(f"v_cvt_pk_bf16_f32 v{o + i}, v{d + 2 * i}, v{d + 2 * i + 1}")
            a(f"buffer_store_dwordx4 {vr(o)}, v{vL16}, {srd(SWS)}, s{sHB if rf else sHA} offen offset:{1024 * h} {self.cfg['hmod']}", "O")
        self.ts("ostored")
        self.emit(self.bg(range(self.nb, c["apre"])))
        self.late = [lambda: a.wait_vm("O"), lambda: self.set_flag(sFL), lambda: self.ts("oflag")]
        self.lateat = c["alate"]

    def a_load(self, b, rf):
        a = self.a
        s = sA0 + rf
        tab, g, r = STEP[b]
        if r == 0 and rf == 0:
            a(f"s_bfe_u32 s{sT2}, s{tab}, {0x80000 + 8 * g:#x}")
            a(f"s_lshl_b32 s{sT2}, s{sT2}, 10")
            a(f"s_add_u32 s{sA0}, s{sT2}, s{sAO if tab == sTW else sAB}")
        if r == 0 and rf == 1:
            a(f"s_add_u32 s{sA1}, s{sA0}, {144 * K}")
        dst = ar(A_RING + 8 * (b % A_DEPTH) + 4 * rf)
        a(f"buffer_load_dwordx4 {dst}, v{vL16}, {srd(SWS)}, s{s} offen offset:{1024 * (r % 4)} sc1", f"A{b}")

    def p2_start(self, early=False):
        a = self.a
        a(f"s_mul_i32 s{sT0}, s{sW}, {20 * K}")
        a(f"s_add_u32 s{sAB}, s{sAO}, s{sT0}")
        a(f"s_sub_u32 s{sAB}, s{sAB}, {112 * K}")
        if not early and self.lateat == 0:
            self.emit(self.late)
        a.wait_vm("poll")
        self.ts("poll1")
        self.poll_check(sAB + 1)
        self.ts("hpoll")
        for b in range(self.cfg["depth"]):
            self.a_load(b, 0)
            self.a_load(b, 1)
            if not early and b + 1 == self.lateat:
                self.emit(self.late)
        self.started = True

    def phase2(self):
        a = self.a
        OM, BB = 80, 144
        c = self.cfg
        D, ins = c["depth"], c["ins"]
        gates = {16: (sPH, "bpoll") + tuple(c["gb"][self.role == "att"]), 28: (sPG, "opoll") + tuple(c["go"])}
        assert self.nm == NB_REG
        if not self.started:
            self.p2_start()
        elif self.lateat == 0:
            self.emit(self.late)
        for so, _, p, _ in gates.values():
            if p < 0:
                a(self.poll_load(so), "poll")
        nxa, open_ = [D, D], 16
        scale = lambda n: [f"v_pk_mul_f32 {vr(ACC + 16 * n + 2 * i, 2)}, {vr(ACC + 16 * n + 2 * i, 2)}, "
                           f"{vr(OM + 16 * (n >> 1) + 2 * i, 2)}" for i in range(8)]
        par = 0
        for b in range(36):
            if b in (0, 1, 4, 8, 12, 18, 24, 30):
                self.ts(f"b{b}")
            nxt = []
            if b < 35 and L_OF[b + 1] >= NB_REG:
                assert L_OF[b + 1] < self.nb
                a.wait_vm(f"B{L_OF[b + 1]}")
                nxt = self.b_reads(L_OF[b + 1], lambda o: vr(BB + 8 * ((b + 1) & 1) + o, 2))
            for n in range(4):
                rf, ct = n >> 1, n & 1
                d = vr(ACC + 16 * n, 16)
                af = ar(A_RING + 8 * (b % A_DEPTH) + 4 * rf)
                bf = ar(8 * L_OF[b] + 4 * ct) if L_OF[b] < NB_REG else vr(BB + 8 * (b & 1) + 4 * ct)
                assert b < nxa[rf]
                a(f"v_mfma_f32_32x32x16_bf16 {d}, {af}, {bf}, {d if b else 0}")
                if b == 35 and c["t1"]:
                    if n == 0:
                        a(f"s_mov_b32 m0, s{sBA}")
                    for r in range(*((0, 0), (0, 0), (0, 7), (7, 16))[n]):
                        a(f"ds_write_addtid_b32 v{ACC + r} offset:{256 * r}")
                if n < 2:
                    self.emit(nxt[2 * n:2 * n + 2])
                if n == 0 and open_ in gates and gates[open_][3] == b:
                    so, name = gates[open_][:2]
                    self.poll_check(so)
                    self.ts(name)
                    if open_ == 28:
                        a(f"buffer_load_dword v{vOMv}, v{vOMa}, {srd(SWS)}, s{sOM} offen sc1")
                    open_ = 28 if open_ == 16 else 36
                if ct == 1:
                    lim = min(b + D + 1, open_, nxa[0] + c["catch"]) if rf == 0 else nxa[0]
                    if lim - nxa[rf] > 1:
                        for x in range(nxa[0], lim - 1):
                            self.a_load(x, 0)
                            self.a_load(x, 1)
                        nxa = [lim - 1, lim - 1]
                    if nxa[rf] < lim:
                        self.a_load(nxa[rf], rf)
                        nxa[rf] += 1
                if n == 1 and self.lateat == D + 1 + b:
                    self.emit(self.late)
                if n == 0 and b >= ins and self.nb < 36:
                    self.emit(self.bg([self.nb]))
                if (b, n) in ((27, 2), (27, 3), (28, 0), (28, 1)):
                    self.emit(scale((n + 2) & 3))
                if n == 3:
                    for so, _, p, _ in gates.values():
                        if p == b:
                            a(self.poll_load(so), "poll")
                if n == 2 and b == 24:
                    a(f"ds_write_b32 v{vOMw}, v{vOMv}", "om")
                if n >= 2 and b == 25:
                    a.wait_lg("om")
                    for q in range(4):
                        a(f"ds_read_b128 {vr(OM + 16 * rf * ct + 4 * q)}, v{vOMr} offset:{128 * ct + 32 * q}")
        self.ts("p2end")
        if not c["t1"]:
            a(f"s_mov_b32 m0, s{sBA}")
        for r in range(16 * c["t1"], 64):
            a(f"ds_write_addtid_b32 v{ACC + r} offset:{256 * r}")
        a.wait_all(vm=False)
        a("s_barrier")
        R = 80
        for u in range(4):
            i, ct = u >> 1, u & 1
            for p in range(4):
                a(f"ds_read_b128 {vr(R + 16 * u + 4 * p)}, v{vRa} offset:{16384 * p + 4096 * ct + 1024 * i}")
        for u in range(4):
            i, ct = u >> 1, u & 1
            b = R + 16 * u
            for h in range(2):
                a(f"v_pk_add_f32 {vr(b + 2 * h, 2)}, {vr(b + 2 * h, 2)}, {vr(b + 4 + 2 * h, 2)}")
                a(f"v_pk_add_f32 {vr(b + 8 + 2 * h, 2)}, {vr(b + 8 + 2 * h, 2)}, {vr(b + 12 + 2 * h, 2)}")
            for h in range(2):
                a(f"v_pk_add_f32 {vr(b + 2 * h, 2)}, {vr(b + 2 * h, 2)}, {vr(b + 8 + 2 * h, 2)}")
            a(f"v_cvt_pk_bf16_f32 v{b}, v{b}, v{b + 1}")
            a(f"v_cvt_pk_bf16_f32 v{b + 1}, v{b + 2}, v{b + 3}")
            a(f"buffer_store_dwordx2 {vr(b, 2)}, v{vOa}, {srd(SOUT)}, s{sO1 if i else sO0} offen offset:{64 * ct} {c.get('omod', '')}")
        if self.diag:
            self.ts("stored")
            a.wait_all()
            self.ts("end")
            a(f"s_memrealtime {sp(sTS + 6)}")
            self.ts_flush()
            for lane, r in ((60, sTS + 2), (61, sTS + 4), (62, sTS + 6), (63, sSPIN)):
                a(f"v_writelane_b32 v{vTS}, s{r}, {lane}")
            a(f"s_lshl2_add_u32 s{sT0}, s2, s{sW}")
            a(f"s_lshl_b32 s{sT0}, s{sT0}, 8")
            a(f"s_add_u32 s{sT0}, s{sT0}, {WS_TS}")
            a(f"buffer_store_dword v{vTS}, v{vOMa}, {srd(SWS)}, s{sT0} offen")
        a("s_endpgm")

    def build(self):
        a = self.a
        self.common()
        st = a.state()
        saved = {}
        for role in ("ffn", "att"):
            self.role, self.pitch = role, 3584 if role == "ffn" else 3072
            if role == "att":
                a.label("L_att")
                a.set_state(st)
            self.early(role)
            saved[role] = (a.state(), self.ts_pend)
            self.ts_pend = None
            a.raw(f"s_branch L_{role}_rest")
        for role in ("ffn", "att"):
            self.role, self.pitch = role, 3584 if role == "ffn" else 3072
            if role == "att":
                a.raw(".p2align 7")
            a.label(f"L_{role}_rest")
            state, self.ts_pend = saved[role]
            a.set_state(state)
            self.setup(role)
            self.main_loop(role)
            self.ffn_epilogue() if role == "ffn" else self.att_epilogue()
            self.phase2()
        a.label("L_exit")
        head = open("cdna_kernels/" + KNAME[:-7] + ".s.ref").read().split("; Override")[0]
        return (head + "; @launch grid=(256,1,1) block=(256,1,1) lds=163840\n"
                + '.amdgcn_target "amdgcn-amd-amdhsa--gfx950"\n.text\n'
                + f".globl {KNAME}\n.p2align 8\n.type {KNAME},@function\n{KNAME}:\n"
                + a.text() + "  s_endpgm\n"
                + f'.section .rodata,"a"\n.p2align 6\n.amdhsa_kernel {KNAME}\n'
                + "  .amdhsa_next_free_vgpr 512\n  .amdhsa_next_free_sgpr 102\n  .amdhsa_accum_offset 256\n"
                + "  .amdhsa_group_segment_fixed_size 0\n  .amdhsa_kernarg_size 80\n  .amdhsa_user_sgpr_count 2\n"
                + "  .amdhsa_user_sgpr_kernarg_segment_ptr 1\n  .amdhsa_system_sgpr_workgroup_id_x 1\n"
                + "  .amdhsa_float_denorm_mode_32 3\n.end_amdhsa_kernel\n")


if __name__ == "__main__":
    out = sys.argv[1]
    diag = len(sys.argv) > 2 and sys.argv[2] == "diag"
    cfg = json.loads(sys.argv[3]) if len(sys.argv) > 3 else None
    g = Gen2(diag, cfg)
    txt = g.build()
    open(out, "w").write(txt)
    if diag:
        json.dump(dict(g.tsn, bit=g.rolebit), open(out + ".json", "w"))
    print("instructions", len(g.a.out), "nop states", g.a.nops)
```
